```python
import torch

def _softmax(x, axis=-1):
    return torch.softmax(x, dim=axis)
def _gelu(x):
    return torch.nn.functional.gelu(x, approximate="tanh")
def _silu(x):
    return torch.nn.functional.silu(x)
def _sigmoid(x):
    return torch.sigmoid(x)
def _layernorm(x, axis=-1, eps=1e-5):
    m = x.mean(dim=axis, keepdim=True)
    v = x.var(dim=axis, keepdim=True, unbiased=False)
    return (x - m) / torch.sqrt(v + eps)
def _scatter_add(tgt, idx, src, axis=0):
    return tgt.clone().index_add_(axis, idx, src)
def _segment_sum(src, seg, n):
    out = torch.zeros((n,) + src.shape[1:], dtype=src.dtype)
    return out.index_add_(0, seg, src)
def _pad(x, pw):
    flat = tuple(v for pair in reversed(pw) for v in pair)
    return torch.nn.functional.pad(x, flat)

kernel_name = 'concat_heads__gqa_block_cached__mha_block_cached__near_ridge'

def setup_inputs():

    _w = (lambda a: (lambda t: t.to(torch.bfloat16) if t.is_floating_point() else t)(torch.as_tensor(a)))
    def _A_setup():
        B, Sq, D = 8, 144, 576
        Hq, Hkv, Sk, Dh = 32, 16, 1024, 128
        assert Hq % Hkv == 0, (Hq, Hkv)
        return {
            "x": _w((lambda *s: torch.randn(*s, dtype=torch.bfloat16) * 0.8)(B, Sq, D)),
            "k_cache": _w((lambda *s: torch.randn(*s, dtype=torch.bfloat16) * 0.8)(B, Hkv, Sk, Dh)),
            "v_cache": _w((lambda *s: torch.randn(*s, dtype=torch.bfloat16) * 0.05)(B, Hkv, Sk, Dh)),
            "wq": _w((lambda *s: torch.randn(*s, dtype=torch.bfloat16) * 0.8)(D, Hq * Dh) * (D ** -0.5)),
            "wo": _w((lambda *s: torch.randn(*s, dtype=torch.bfloat16) * 0.05)(Hq * Dh, D) * ((Hq * Dh) ** -0.5)),
        }
    _A_in = _A_setup()

    def _B_setup():
        B, Sq, D = 8, 144, 576
        H, Sk, Dh = 32, 1024, 128
        return {
            "x": _w((lambda *s: torch.randn(*s, dtype=torch.bfloat16) * 0.8)(B, Sq, D)),
            "k_cache": _w((lambda *s: torch.randn(*s, dtype=torch.bfloat16) * 0.8)(B, H, Sk, Dh)),
            "v_cache": _w((lambda *s: torch.randn(*s, dtype=torch.bfloat16) * 0.05)(B, H, Sk, Dh)),
            "wq": _w((lambda *s: torch.randn(*s, dtype=torch.bfloat16) * 0.8)(D, H * Dh) * (D ** -0.5)),
            "wo": _w((lambda *s: torch.randn(*s, dtype=torch.bfloat16) * 0.05)(H * Dh, D) * ((H * Dh) ** -0.5)),
        }
    _B_in = _B_setup()

    return {
        "A_x": _A_in["x"],
        "A_k_cache": _A_in["k_cache"],
        "A_v_cache": _A_in["v_cache"],
        "A_wq": _A_in["wq"],
        "A_wo": _A_in["wo"],
        "B_x": _B_in["x"],
        "B_k_cache": _B_in["k_cache"],
        "B_v_cache": _B_in["v_cache"],
        "B_wq": _B_in["wq"],
        "B_wo": _B_in["wo"],
    }

def reference(A_x, A_k_cache, A_v_cache, A_wq, A_wo, B_x, B_k_cache, B_v_cache, B_wq, B_wo):
    def _A_ref(x, k_cache, v_cache, wq, wo):
        B, Sq, D = x.shape
        Hq, Dh = 32, 128
        Hkv = k_cache.shape[1]
        rep = Hq // Hkv
        q = (lambda x, *d: x.permute(*d))((x @ wq).reshape(B, Sq, Hq, Dh), 0, 2, 1, 3)
        k = (lambda x, n, axis: torch.repeat_interleave(x, n, dim=axis))(k_cache, rep, axis=1)
        v = (lambda x, n, axis: torch.repeat_interleave(x, n, dim=axis))(v_cache, rep, axis=1)
        scores = torch.einsum("bhqd,bhkd->bhqk", q, k) * (Dh ** -0.5)
        p = _softmax(scores, axis=-1)
        o = torch.einsum("bhqk,bhkd->bhqd", p, v)
        return (lambda x, *d: x.permute(*d))(o, 0, 2, 1, 3).reshape(B, Sq, Hq * Dh) @ wo

    def _B_ref(x, k_cache, v_cache, wq, wo):
        B, Sq, D = x.shape
        H, Dh = 32, 128
        q = (lambda x, *d: x.permute(*d))((x @ wq).reshape(B, Sq, H, Dh), 0, 2, 1, 3)
        scores = torch.einsum("bhqd,bhkd->bhqk", q, k_cache) * (Dh ** -0.5)
        p = _softmax(scores, axis=-1)
        o = torch.einsum("bhqk,bhkd->bhqd", p, v_cache)
        return (lambda x, *d: x.permute(*d))(o, 0, 2, 1, 3).reshape(B, Sq, H * Dh) @ wo

    a = _A_ref(A_x, A_k_cache, A_v_cache, A_wq, A_wo)
    b = _B_ref(B_x, B_k_cache, B_v_cache, B_wq, B_wo)
    return torch.concatenate([a, b], axis=-1)
```

```python
import re

class R:
    def __init__(self, f, i, n=1):
        self.f, self.i, self.n = f, i, n
    def __str__(self):
        if self.n == 1: return f"{self.f}{self.i}"
        return f"{self.f}[{self.i}:{self.i+self.n-1}]"
    def regs(self):
        return [(self.f, self.i + k) for k in range(self.n)]
    def sub(self, o, n=1):
        assert o + n <= self.n, (self, o, n)
        return R(self.f, self.i + o, n)
    def __getitem__(self, o):
        return self.sub(o, 1)

def V(i, n=1): return R('v', i, n)
def A(i, n=1): return R('a', i, n)
def S(i, n=1): return R('s', i, n)

def regs_of(x):
    if isinstance(x, R): return x.regs()
    if isinstance(x, tuple) and len(x) == 2 and isinstance(x[0], str) and isinstance(x[1], int): return [x]
    if isinstance(x, (list, tuple)):
        o = []
        for y in x: o += regs_of(y)
        return o
    return []

class Ins:
    __slots__ = ('text', 'kind', 'rd', 'wr', 'states', 'passes', 'srcc', 'srcab', 'cost', 'meta')
    def __init__(self, text, kind, rd=(), wr=(), states=1, passes=0, srcc=(), srcab=(), meta=None):
        self.text, self.kind = text, kind
        self.rd, self.wr = list(rd), list(wr)
        self.states, self.passes = states, passes
        self.srcc, self.srcab = list(srcc), list(srcab)
        self.meta = meta

TRANS = ('v_exp_f32', 'v_rcp_f32', 'v_log_f32', 'v_rsq_f32', 'v_sqrt_f32')

class Gen:
    def __init__(self, age=10):
        self.ins = []
        self.lds_pending = []
        self.vm_log = []
        self.vm_done = 0
        self.age = age
        self.nlabel = 0
    def _push(self, ins):
        self.ins.append(ins)
        return ins
    def _auto_lgkm(self, regs):
        regs = set(regs)
        k = -1
        for idx, (dst, _) in enumerate(self.lds_pending):
            if dst & regs: k = idx
        if k < 0: return
        now = len(self.ins)
        while k + 1 < len(self.lds_pending) and now - self.lds_pending[k + 1][1] >= self.age:
            k += 1
        n = len(self.lds_pending) - 1 - k
        n = min(n, 15)
        self._push(Ins(f"s_waitcnt lgkmcnt({n})", 'wait'))
        self.lds_pending = self.lds_pending[len(self.lds_pending) - n:] if n else []
    def raw(self, text, kind='salu', rd=(), wr=(), **kw):
        rd, wr = regs_of(rd), regs_of(wr)
        self._auto_lgkm(rd + wr)
        return self._push(Ins(text, kind, rd, wr, **kw))
    def comment(self, t):
        self._push(Ins(f"; {t}", 'comment', states=0))
    def label(self, name):
        self._push(Ins(f"{name}:", 'label', states=0))
    def newlabel(self, base='L'):
        self.nlabel += 1
        return f"{base}_{self.nlabel}"
    def salu(self, text, rd=(), wr=()):
        return self.raw(text, 'salu', rd, wr)
    def nop(self, n):
        while n > 0:
            k = min(n, 16)
            self._push(Ins(f"s_nop {k-1}", 'nop', states=k))
            n -= k
    def branch(self, text):
        return self._push(Ins(text, 'branch'))
    def barrier(self):
        return self._push(Ins("s_barrier", 'barrier'))
    def wait_lgkm0(self):
        self._push(Ins("s_waitcnt lgkmcnt(0)", 'wait'))
        self.lds_pending = []
    def valu(self, op, dst, *srcs, extra_rd=(), extra_wr=(), mods=''):
        txt = f"{op} {dst}, " + ", ".join(str(s) for s in srcs) + (f" {mods}" if mods else '')
        rd = regs_of(list(srcs)) + regs_of(list(extra_rd))
        if op.startswith('v_fmac') or op.startswith('v_permlane'):
            rd += regs_of(dst)
        wr = regs_of(dst) + regs_of(list(extra_wr))
        if op.startswith('v_permlane'):
            wr += regs_of(srcs[0])
        kind = 'trans' if op.split('_e')[0] in TRANS else 'valu'
        return self.raw(txt, kind, rd, wr, meta=op)
    def mfma(self, shape, D, Aop, Bop, C):
        passes = {'32x32x16': 8, '16x16x32': 4, '16x16x16': 4}[shape]
        txt = f"v_mfma_f32_{shape}_bf16 {D}, {Aop}, {Bop}, {C}"
        rd = regs_of(Aop) + regs_of(Bop) + regs_of(C)
        self._auto_lgkm(rd + regs_of(D))
        return self._push(Ins(txt, 'mfma', rd, regs_of(D), passes=passes, srcc=regs_of(C), srcab=regs_of(Aop) + regs_of(Bop), meta=(D.f, D.i, D.n, shape)))
    def ds_read(self, op, dst, addr, offset=0):
        assert 0 <= offset <= 65535, offset
        txt = f"{op} {dst}, {addr}" + (f" offset:{offset}" if offset else '')
        self._auto_lgkm(regs_of(addr) + regs_of(dst))
        ins = self._push(Ins(txt, 'ds_rd', regs_of(addr), regs_of(dst)))
        self.lds_pending.append((set(regs_of(dst)), len(self.ins)))
        return ins
    def ds_write(self, op, addr, src, offset=0):
        assert 0 <= offset <= 65535, offset
        txt = f"{op} {addr}, {src}" + (f" offset:{offset}" if offset else '')
        self._auto_lgkm(regs_of(addr) + regs_of(src))
        ins = self._push(Ins(txt, 'ds_wr', regs_of(addr) + regs_of(src), []))
        self.lds_pending.append((set(), len(self.ins)))
        return ins
    def bpermute(self, dst, addr, src):
        txt = f"ds_bpermute_b32 {dst}, {addr}, {src}"
        self._auto_lgkm(regs_of(addr) + regs_of(src) + regs_of(dst))
        ins = self._push(Ins(txt, 'ds_rd', regs_of(addr) + regs_of(src), regs_of(dst)))
        self.lds_pending.append((set(regs_of(dst)), len(self.ins)))
        return ins
    def dma(self, voff, srd, soff, offset=0, token=None, flags=''):
        assert 0 <= offset <= 4095, offset
        txt = f"buffer_load_dwordx4 {voff}, {srd}, {soff} offen" + (f" offset:{offset}" if offset else '') + (f" {flags}" if flags else '') + " lds"
        self._auto_lgkm(regs_of(voff))
        self.vm_log.append(token)
        return self._push(Ins(txt, 'dma', regs_of(voff) + regs_of(srd) + regs_of(soff) + [('m0', 0)], []))
    def vload(self, op, dst, voff, srd, soff, offset=0, token=None, flags=''):
        assert 0 <= offset <= 4095, offset
        txt = f"{op} {dst}, {voff}, {srd}, {soff} offen" + (f" offset:{offset}" if offset else '') + (f" {flags}" if flags else '')
        self._auto_lgkm(regs_of(voff) + regs_of(dst))
        self.vm_log.append(token)
        return self._push(Ins(txt, 'vload', regs_of(voff) + regs_of(srd) + regs_of(soff), regs_of(dst)))
    def vstore(self, op, src, voff, srd, soff, offset=0, token=None, flags=''):
        assert 0 <= offset <= 4095, offset
        txt = f"{op} {src}, {voff}, {srd}, {soff} offen" + (f" offset:{offset}" if offset else '') + (f" {flags}" if flags else '')
        self._auto_lgkm(regs_of(voff) + regs_of(src))
        self.vm_log.append(token)
        return self._push(Ins(txt, 'vstore', regs_of(voff) + regs_of(srd) + regs_of(soff) + regs_of(src), [], meta=src.n))
    def wait_vm(self, *tokens):
        last = -1
        for i, t in enumerate(self.vm_log):
            if t in tokens: last = i
        assert last >= 0, tokens
        if last < self.vm_done: return
        n = len(self.vm_log) - 1 - last
        assert n <= 63
        self._push(Ins(f"s_waitcnt vmcnt({n})", 'wait'))
        self.vm_done = last + 1
    def wait_vm_n(self, n):
        self._push(Ins(f"s_waitcnt vmcnt({n})", 'wait'))
        self.vm_done = max(self.vm_done, len(self.vm_log) - n)
    def set_m0(self, val):
        return self.raw(f"s_mov_b32 m0, {val}", 'salu', regs_of(val), [('m0', 0)])
    def text(self):
        out = []
        for i in self.ins:
            if i.kind in ('label', 'comment'): out.append(i.text)
            else: out.append("    " + i.text)
        return "\n".join(out) + "\n"

def hazard_fix(ins_list, insert=True, verbose=False):
    out = []
    pos = 0
    last_valu_wr = {}
    last_trans_wr = {}
    last_mfma_wr = {}
    last_mfma_srcc = {}
    last_valu_sgpr_wr = {}
    last_m0 = -100
    last_store = {}
    nins = 0
    MF_AB = {8: 12, 4: 8}; MF_VALU = {8: 12, 4: 8}; MF_OVL = {8: 10, 4: 6}; MF_WAR = {8: 7, 4: 3}
    for I in ins_list:
        if I.kind in ('label', 'comment'):
            out.append(I); continue
        need = 0
        def req(ppos, n):
            nonlocal need
            d = pos - ppos - 1
            if d < n: need = max(need, n - d)
        k = I.kind
        isvalu = k in ('valu', 'trans')
        if k == 'mfma':
            for r in I.rd:
                if r in last_valu_wr: req(last_valu_wr[r], 2)
            for r in I.srcab:
                if r in last_mfma_wr: req(last_mfma_wr[r][0], MF_AB[last_mfma_wr[r][1]])
            for r in I.srcc:
                if r in last_mfma_wr:
                    p, ps, meta = last_mfma_wr[r]
                    same = (meta[0], meta[1], meta[2]) == (I.srcc[0][0], I.srcc[0][1], len(I.srcc)) and ps == I.passes
                    if not same: req(p, MF_OVL[ps])
            for r in I.wr:
                if r in last_mfma_wr and r not in I.srcc:
                    req(last_mfma_wr[r][0], MF_VALU[last_mfma_wr[r][1]])
        else:
            if k in ('valu', 'trans', 'ds_rd', 'ds_wr', 'dma', 'vload', 'vstore'):
                for r in I.rd + I.wr:
                    if r in last_mfma_wr: req(last_mfma_wr[r][0], MF_VALU[last_mfma_wr[r][1]])
            if isvalu:
                for r in I.wr:
                    if r in last_mfma_srcc: req(last_mfma_srcc[r][0], MF_WAR[last_mfma_srcc[r][1]])
                    if r in last_store: req(last_store[r], 2)
                if k == 'valu' or True:
                    for r in I.rd:
                        if r in last_trans_wr and k != 'trans': req(last_trans_wr[r], 1)
                        if r[0] in ('s', 'vcc') and r in last_valu_sgpr_wr: req(last_valu_sgpr_wr[r], 2)
                op = I.meta or ''
                if op.startswith('v_readfirstlane') or op.startswith('v_readlane'):
                    for r in I.rd:
                        if r in last_valu_wr: req(last_valu_wr[r], 1)
                if op.startswith('v_permlane'):
                    for r in I.rd:
                        if r in last_valu_wr: req(last_valu_wr[r], 2)
            if k in ('ds_rd', 'vload'):
                for r in I.wr:
                    if r in last_store: req(last_store[r], 1)
            if k in ('dma', 'vload', 'vstore'):
                for r in I.rd:
                    if r[0] == 's' and r in last_valu_sgpr_wr: req(last_valu_sgpr_wr[r], 5)
            if k == 'dma':
                req(last_m0, 1)
            if k in ('ds_wr', 'vstore', 'ds_rd', 'dma', 'vload'):
                for r in I.rd:
                    if r in last_trans_wr: req(last_trans_wr[r], 1)
        if need:
            if not insert:
                raise RuntimeError(f"hazard at '{I.text}' need {need}")
            if verbose: print(f"  nop {need} before {I.text}")
            n = need
            while n > 0:
                kk = min(n, 16)
                out.append(Ins(f"s_nop {kk-1}", 'nop', states=kk))
                n -= kk
            pos += need
            nins += 1
        if isvalu:
            for r in I.wr:
                if r[0] in ('v', 'a'):
                    last_valu_wr[r] = pos
                    if k == 'trans': last_trans_wr[r] = pos
                    else: last_trans_wr.pop(r, None)
                else:
                    last_valu_sgpr_wr[r] = pos
        if k == 'mfma':
            for r in I.wr: last_mfma_wr[r] = (pos, I.passes, I.meta)
            for r in I.srcc: last_mfma_srcc[r] = (pos, I.passes)
        if k == 'salu' and ('m0', 0) in I.wr: last_m0 = pos
        if k == 'vstore' and I.meta and I.meta >= 3:
            for r in I.rd:
                if r[0] in ('v', 'a'): last_store[r] = pos
        out.append(I)
        pos += I.states
    return out, nins
```

```python
import sys, math, struct
from asmgen import *

NAME = 'concat_heads__gqa_block_cached__mha_block_cached__near_ridge'
QSCALE = math.log2(math.e) / math.sqrt(128.0)
def f32hex(x): return '0x%08x' % struct.unpack('<I', struct.pack('<f', x))[0]

KSLOT = 17408; KBASE = 0
VSLOT = 16384; VBASE = 69632
LDS_BYTES = 163840
QST = [34816, 86016, 111616, 137216]
WSL = [135168, 147456, 0, 12288, 24576, 36864]
EX = 69632
EXX = 61440
MS = 36864
PART_BYTES = 165888

sW, sP_, sJ, sB, sHP = S(3), S(4), S(5), S(6), S(7)
sT0, sT1, sT2, sT3 = S(8), S(9), S(10), S(11)
srdX, srdWQ, srdK, srdV, srdWO, srdP = S(44, 4), S(48, 4), S(52, 4), S(56, 4), S(60, 4), S(64, 4)
sKOFF, sLOOP, sRET, sFIRST, sTHR = S(70), S(72), S(73), S(74), S(75)
sMK, sMV, sMX, sMW, sMO = S(76), S(77), S(78), S(79), S(82)
sEXM = S(80, 2)
sSC = S(83)
srdD = S(84, 4)

def SS(par, qb): return V(32 * par + 16 * qb, 16)
def NM(qb): return V(64 + 16 * qb, 16)
def PP(par, qb, ks): return V(96 + 16 * par + 8 * qb + 4 * ks, 4)
def SX(par): return V(128 + 4 * par, 4)
NMX = V(136, 4)
def PX(par): return V(140 + 2 * par, 2)
def KF(i): return V(144 + 4 * (i & 3), 4)
def VF(i): return V(160 + 4 * (i & 3), 4)
def KXF(i): return V(176 + 4 * (i & 3), 4)
def VXF(i): return V(192 + 2 * (i & 3), 2)
def TMP(i): return V(200 + (i & 7))
SUM = [V(208), V(209), V(210)]
LL = [V(211), V(212), V(213)]
vMX = V(214)
vH = [V(215), V(216), V(217), V(218)]
vBP32 = V(219); vBP16 = V(220)
aK = [V(238), V(239)]; aKX = V(240); aV = [V(241), V(242)]; aVX = [V(243), V(244)]
dK = [V(245), V(246), V(247), V(248)]; dV = [V(249), V(250)]
vLANE = V(251); vT = [V(252), V(253), V(254), V(255)]
def OA(qb, db): return A(64 * qb + 16 * db, 16)
def OXA(e): return A(128 + 4 * e, 4)
def QF(qb, ds): return A(160 + 32 * qb + 4 * ds, 4)
def QXF(ds32): return A(224 + 4 * ds32, 4)

C_VALU, C_VOP3, C_TRANS, C_DS, C_DMA, C_SALU = 4, 5, 8, 5, 16, 4

def interleave(slots, fixed, stream, s0, s1):
    n = len(slots)
    free = [0] * n
    for s in range(s0, s1 + 1):
        fc = sum(c for _, c in fixed.get(s, []))
        free[s] = max(2, slots[s][1] - fc)
    tot_free = sum(free); tot = sum(c for _, c in stream)
    scale = tot / tot_free if tot_free else 0
    budget = 0.0; k = 0
    for s in range(n):
        slots[s][0]()
        fx = list(fixed.get(s, []))
        for e, _ in fx: e()
        budget += free[s] * scale
        while k < len(stream) and (stream[k][1] * 0.5 <= budget or s == s1):
            stream[k][0](); budget -= stream[k][1]; k += 1
    assert k == len(stream)

class K1:
    def __init__(self, g, mha, opts):
        self.g, self.mha, self.o = g, mha, opts
        self.tag = 'B' if mha else 'A'
        self.nk = 4 if mha else 2
        self.kvflags = opts.get('kvflags', 'nt')
        self.wflags = opts.get('wflags', '')
        self.rets = []
    def lane_expr_setup(self):
        pass
    def k_dma(self, t_slot, token, soff):
        g = self.g
        fns = []
        def m0(): g.raw(f"s_add_u32 m0, {sMK}, {KBASE + KSLOT * t_slot}", 'salu', [sMK], [('m0', 0)])
        fns.append((m0, C_SALU))
        for i in range(self.nk):
            fns.append((lambda i=i: g.dma(dK[i], srdK, soff, i * 1088, token, self.kvflags), C_DMA))
        return fns
    def v_dma(self, t_slot, token, soff):
        g = self.g
        fns = []
        def m0(): g.raw(f"s_add_u32 m0, {sMV}, {VBASE + VSLOT * t_slot}", 'salu', [sMV], [('m0', 0)])
        fns.append((m0, C_SALU))
        for i in range(self.nk):
            fns.append((lambda i=i: g.dma(dV[i & 1], srdV, soff, i * 1024, token, self.kvflags), C_DMA))
        return fns
    def run(self, fns):
        for f, _ in fns: f()

    def setup(self):
        g, mha = self.g, self.mha
        pb = 26 if mha else 16
        px, pk, pv, pwq, pwo = (S(pb + 2 * i, 2) for i in range(5))
        def mk_srd(srd, ptr, off_sgpr, bias, size):
            g.salu(f"s_add_u32 {srd[0]}, {ptr[0]}, {off_sgpr}")
            g.salu(f"s_addc_u32 {srd[1]}, {ptr[1]}, 0")
            if bias:
                g.salu(f"s_sub_u32 {srd[0]}, {srd[0]}, {bias}")
                g.salu(f"s_subb_u32 {srd[1]}, {srd[1]}, 0")
            g.salu(f"s_and_b32 {srd[1]}, {srd[1]}, 0xffff")
            if isinstance(size, int): g.salu(f"s_mov_b32 {srd[2]}, {size + bias}")
            else: g.salu(f"s_add_u32 {srd[2]}, {size}, {bias}")
            g.salu(f"s_mov_b32 {srd[3]}, 0x20000")
        g.salu(f"s_mul_i32 {sT0}, {sB}, 165888")
        mk_srd(srdX, px, sT0, 0, 165888)
        g.salu(f"s_lshl_b32 {sT0}, {sHP}, 9")
        g.salu(f"s_sub_u32 {sT1}, {576*8192}, {sT0}")
        mk_srd(srdWQ, pwq, sT0, 3072, sT1)
        if mha:
            g.salu(f"s_lshl_b32 {sT0}, {sB}, 5")
            g.salu(f"s_lshl_b32 {sT1}, {sHP}, 1")
            g.salu(f"s_add_u32 {sT0}, {sT0}, {sT1}")
            g.salu(f"s_add_u32 {sT0}, {sT0}, {sP_}")
        else:
            g.salu(f"s_lshl_b32 {sT0}, {sB}, 4")
            g.salu(f"s_add_u32 {sT0}, {sT0}, {sHP}")
        g.salu(f"s_lshl_b32 {sT0}, {sT0}, 18")
        mk_srd(srdK, pk, sT0, 192, 262144)
        mk_srd(srdV, pv, sT0, 16384 + 1024, 262144)
        g.salu(f"s_mul_i32 {sT0}, {sHP}, {256*1152}")
        mk_srd(srdWO, pwo, sT0, 2048, 256 * 1152)
        g.salu(f"s_lshl_b32 {sT0}, {sB}, 4")
        g.salu(f"s_add_u32 {sT0}, {sT0}, {sHP}")
        if mha: g.salu(f"s_add_u32 {sT0}, {sT0}, 128")
        g.salu(f"s_mul_i32 {sT0}, {sT0}, {PART_BYTES}")
        mk_srd(srdP, S(40, 2), sT0, 0, PART_BYTES)
        if self.o.get('dump'):
            g.salu(f"s_lshl_b32 {sT0}, {sB}, 4")
            g.salu(f"s_add_u32 {sT0}, {sT0}, {sHP}")
            if mha: g.salu(f"s_add_u32 {sT0}, {sT0}, 128")
            g.salu(f"s_lshl_b32 {sT0}, {sT0}, 18")
            g.salu(f"s_add_u32 {sT0}, {sT0}, {64<<20}")
            mk_srd(srdD, S(40, 2), sT0, 0, 1 << 18)
        if mha:
            g.salu(f"s_mul_i32 {sMK}, {sP_}, 8704"); g.salu(f"s_mul_i32 {sT0}, {sJ}, 4352"); g.salu(f"s_add_u32 {sMK}, {sMK}, {sT0}")
            g.salu(f"s_lshl_b32 {sMV}, {sW}, 12")
        else:
            g.salu(f"s_mul_i32 {sMK}, {sW}, 2176")
            g.salu(f"s_lshl_b32 {sMV}, {sW}, 11")
        g.salu(f"s_lshl_b32 {sMX}, {sW}, 11")
        g.salu(f"s_lshl_b32 {sMW}, {sW}, 12"); g.salu(f"s_add_u32 {sMW}, {sMW}, 9216")
        g.salu(f"s_mul_i32 {sMO}, {sW}, 3072")
        g.salu(f"s_lshl_b32 {sT0}, {sW}, 4")
        g.salu(f"s_mov_b64 {sEXM}, 0xffff")
        g.salu(f"s_lshl_b64 {sEXM}, {sEXM}, {sT0}")
        g.salu(f"s_mov_b32 {sTHR}, {f32hex(1024.0)}")
        g.salu(f"s_mov_b32 {sSC}, {f32hex(QSCALE)}")
        t0, t1, t2, t3 = vT
        l = vLANE
        g.valu('v_lshrrev_b32', t0, 4, l)
        g.valu('v_and_b32', t1, 15, l)
        g.valu('v_xor_b32', t1, t0, t1)
        g.valu('v_lshlrev_b32', t1, 4, t1)
        g.valu('v_lshl_add_u32', t1, t0, 8, t1)
        if mha: g.salu(f"s_lshl_b32 {sT0}, {sJ}, 12")
        else: g.salu(f"s_lshl_b32 {sT0}, {sW}, 11")
        g.valu('v_add_u32', t1, sT0, t1)
        for i in range(self.nk):
            g.valu('v_add_u32', dK[i], 192 - 64 * i, t1)
        g.valu('v_and_b32', t2, 1, t0)
        g.valu('v_lshlrev_b32', t2, 2, t2)
        g.valu('v_and_b32', t3, 7, l)
        g.valu('v_xor_b32', t2, t2, t3)
        g.valu('v_lshlrev_b32', t2, 4, t2)
        g.valu('v_lshrrev_b32', t3, 3, l)
        g.valu('v_lshl_add_u32', t1, t3, 8, t2)
        g.valu('v_add_u32', t1, sT0, t1)
        g.valu('v_add_u32', dV[0], 1024, t1)
        g.valu('v_add_u32', dV[1], 128, t1)
        self.dX = [V(238), V(239), V(240)]; self.dW = [V(241), V(242), V(243), V(244)]
        g.valu('v_lshl_add_u32', t1, t3, 13, t2)
        g.salu(f"s_lshl_b32 {sT0}, {sW}, 16")
        g.valu('v_add_u32', t1, sT0, t1)
        for seg in range(4):
            g.valu('v_add_u32', self.dW[seg], 3072 + seg * (128 - 1024), t1)
        g.valu('v_and_b32', t1, 3, t0)
        g.valu('v_and_b32', t2, 3, l)
        g.valu('v_xor_b32', t1, t1, t2)
        g.valu('v_lshlrev_b32', t1, 4, t1)
        g.valu('v_lshrrev_b32', t2, 2, l)
        g.valu('v_mul_u32_u24', t2, 1152, t2)
        g.valu('v_add_u32', t1, t1, t2)
        g.valu('v_add_u32', self.dX[2], 8 * 18432, t1)
        g.salu(f"s_mul_i32 {sT0}, {sW}, {2*18432}")
        g.valu('v_add_u32', self.dX[0], sT0, t1)
        g.valu('v_add_u32', self.dX[1], 18432 - 1024, self.dX[0])

    def q_chunk_dma(self, c):
        g = self.g
        st = QST[(c + 2) % 4]
        tok = ('Q', c)
        fns = []
        fns.append((lambda: g.salu(f"s_mov_b32 {sT2}, {c*64}"), C_SALU))
        fns.append((lambda: g.raw(f"s_add_u32 m0, {sMX}, {st}", 'salu', [sMX], [('m0', 0)]), C_SALU))
        fns.append((lambda: g.dma(self.dX[0], srdX, sT2, 0, tok, self.wflags), C_DMA))
        fns.append((lambda: g.dma(self.dX[1], srdX, sT2, 1024, tok, self.wflags), C_DMA))
        def p8():
            g.raw(f"s_mov_b32 m0, {st + 8192}", 'salu', [], [('m0', 0)])
            g.salu(f"s_mov_b64 exec, {sEXM}")
            g.dma(self.dX[2], srdX, sT2, 0, tok, self.wflags)
            g.salu("s_mov_b64 exec, -1")
        fns.append((p8, C_DMA + 3 * C_SALU))
        fns.append((lambda: g.salu(f"s_mov_b32 {sT3}, {c*262144}"), C_SALU))
        fns.append((lambda: g.raw(f"s_add_u32 m0, {sMW}, {st}", 'salu', [sMW], [('m0', 0)]), C_SALU))
        for seg in range(4):
            fns.append((lambda seg=seg: g.dma(self.dW[seg], srdWQ, sT3, seg * 1024, tok, self.wflags), C_DMA))
        return fns

    def kv_pre(self, kind, t):
        g = self.g
        if kind == 'K':
            return [(lambda: g.salu(f"s_mov_b32 {sT1}, {t*8192}"), C_SALU)] + self.k_dma(t & 3, ('K', t), sT1)
        return [(lambda: g.salu(f"s_mov_b32 {sT1}, {(t+2)*8192}"), C_SALU)] + self.v_dma(t & 3, ('V', t), sT1)

    def qproj(self):
        g = self.g
        l = vLANE; t0, t1, t2, t3 = vT
        def ACC(db, qb): return V(16 * (2 * db + qb), 16)
        def ACX(e): return V(128 + 4 * e, 4)
        def WF(i): return V(160 + 4 * (i & 3), 4)
        def XB(i): return V(176 + 4 * (i & 3), 4)
        def XBX(c): return V(192 + 4 * (c & 1), 4)
        def WXF(i): return V(200 + 4 * (i & 3), 4)
        aXB = [V(224), V(225)]; aXX = V(226); aW = [V(227), V(228)]; aWX = [V(229), V(230)]
        u0, u1, u2, u3, u4 = V(231), V(232), V(233), V(234), V(235)
        for c in range(3): self.run(self.q_chunk_dma(c))
        for kind, t in (('K', 0), ('K', 1), ('V', 0)): self.run(self.kv_pre(kind, t))
        st0 = QST[2]
        g.valu('v_and_b32', u0, 31, l)
        g.valu('v_lshrrev_b32', u1, 5, l)
        g.valu('v_bfe_u32', u2, l, 2, 2)
        g.valu('v_and_b32', u3, 3, l)
        g.valu('v_lshrrev_b32', u4, 4, l)
        g.salu(f"s_lshl_b32 {sT0}, {sJ}, 12"); g.salu(f"s_add_u32 {sT0}, {sT0}, {st0}")
        for ks2 in range(2):
            g.valu('v_or_b32', t0, 2 * ks2, u1)
            g.valu('v_xor_b32', t0, t0, u2)
            g.valu('v_lshlrev_b32', t0, 4, t0)
            g.valu('v_lshl_add_u32', t0, u0, 6, t0)
            g.valu('v_add_u32', aXB[ks2], sT0, t0)
        g.valu('v_xor_b32', t0, u4, u2)
        g.valu('v_lshlrev_b32', t0, 4, t0)
        g.valu('v_and_b32', t1, 15, l)
        g.valu('v_lshl_add_u32', t0, t1, 6, t0)
        g.valu('v_add_u32', aXX, 8192 + st0, t0)
        g.salu(f"s_lshl_b32 {sT0}, {sP_}, 11"); g.salu(f"s_add_u32 {sT0}, {sT0}, {9216 + st0}")
        g.valu('v_lshlrev_b32', t0, 7, u2)
        g.valu('v_add_u32', t0, sT0, t0)
        g.valu('v_lshrrev_b32', t1, 1, u2)
        g.valu('v_and_b32', t2, 1, u3); g.valu('v_lshlrev_b32', t2, 4, t2)
        g.valu('v_lshrrev_b32', t3, 1, u3); g.valu('v_lshl_add_u32', t2, t3, 3, t2)
        g.valu('v_and_b32', t3, 1, u4); g.valu('v_lshl_add_u32', t2, t3, 5, t2)
        g.valu('v_lshl_add_u32', t2, u1, 12, t2)
        g.valu('v_add_u32', t2, t2, t0)
        for b in range(2):
            g.valu('v_xor_b32', t3, b, t1)
            g.valu('v_lshl_add_u32', aW[b], t3, 6, t2)
        g.valu('v_lshlrev_b32', t2, 4, u3)
        g.valu('v_lshl_add_u32', t2, u4, 12, t2)
        g.valu('v_add_u32', t2, t2, t0)
        for b in range(2):
            g.valu('v_xor_b32', t3, b, t1)
            g.valu('v_lshl_add_u32', aWX[b], t3, 6, t2)
        zinit = [(lambda i=i: g.valu('v_accvgpr_write_b32', A(i), 0), C_VOP3) for i in range(160)]
        def rdW(c, i):
            ks2, db = i >> 2, i & 3
            half, b = db >> 1, db & 1
            for u in range(2):
                g.ds_read('ds_read_b64_tr_b16', WF(8 * c + i).sub(2 * u, 2), aW[b], ks2 * 8192 + half * 1024 + u * 512)
        def rdXB(c, i):
            g.ds_read('ds_read_b128', XB(i), aXB[i >> 1], (i & 1) * 2048)
        def rdXX(c): g.ds_read('ds_read_b128', XBX(c), aXX, 0)
        def rdWX(c, e):
            ds, e0 = e >> 1, e & 1
            half, b = ds >> 1, ds & 1
            for u in range(2):
                g.ds_read('ds_read_b64_tr_b16', WXF(8 * c + e).sub(2 * u, 2), aWX[b], half * 1024 + u * 512 + e0 * 8)
        def bump(reg, c):
            d = QST[(c + 3) % 4] - QST[(c + 2) % 4]
            g.valu('v_add_u32', reg, d & 0xffffffff, reg)
        g.wait_vm(('Q', 0)); g.barrier()
        def head_reads(c):
            return [lambda: rdXB(c, 0), lambda: rdXB(c, 1), lambda: rdW(c, 0), lambda: rdW(c, 1), lambda: rdW(c, 2), lambda: rdXX(c), lambda: rdWX(c, 0), lambda: rdWX(c, 1), lambda: rdWX(c, 2)]
        for f in head_reads(0): f()
        NC = 18
        for c in range(NC):
            slots = []; fixed = {}
            def add(s, fn, cost): fixed.setdefault(s, []).append((fn, cost))
            sidx = {}
            for i in range(8):
                ks2, db = i >> 2, i & 3
                for qb in range(2):
                    Cop = 0 if (c == 0 and ks2 == 0) else ACC(db, qb)
                    sidx[('B', 2 * i + qb)] = len(slots)
                    slots.append((lambda db=db, qb=qb, ks2=ks2, i=i, Cop=Cop: g.mfma('32x32x16', ACC(db, qb), WF(8 * c + i), XB(2 * ks2 + qb), Cop), 24))
                e = i
                Cx = 0 if c == 0 else ACX(e)
                sidx[('X', e)] = len(slots)
                slots.append((lambda e=e, Cx=Cx: g.mfma('16x16x32', ACX(e), WXF(8 * c + e), XBX(c), Cx), 8))
            B = lambda i: sidx[('B', i)]; X = lambda e: sidx[('X', e)]
            add(B(0), lambda: rdW(c, 3), 2 * C_DS)
            add(B(0), lambda: rdXB(c, 2), C_DS); add(B(1), lambda: rdXB(c, 3), C_DS)
            add(B(1), lambda: rdWX(c, 3), 2 * C_DS)
            for i in range(4, 8):
                add(B(2 * (i - 4) + 2), lambda i=i: rdW(c, i), 2 * C_DS)
                add(B(2 * (i - 4) + 3), lambda i=i: rdWX(c, i), 2 * C_DS)
            last = (c == NC - 1)
            def bar():
                if not last: g.wait_vm(('Q', c + 1))
                g.barrier()
            add(B(9), bar, 8)
            if c + 3 < NC: dm = self.q_chunk_dma(c + 3)
            elif c == 15: dm = self.kv_pre('K', 2) + self.kv_pre('K', 3)
            elif c == 16: dm = self.kv_pre('V', 1)
            else: dm = self.kv_pre('V', 2)
            post = []
            if not last:
                for reg in aXB + [aXX] + aW + aWX:
                    post.append((lambda reg=reg: bump(reg, c), C_VOP3))
                hr = head_reads(c + 1)
                add(B(10), lambda post=post: [f() for f, _ in post], 7 * C_VOP3)
                add(B(10), hr[0], C_DS); add(B(10), hr[1], C_DS)
                add(B(11), hr[2], 2 * C_DS)
                add(B(12), hr[3], 2 * C_DS)
                add(B(12), hr[5], C_DS)
                add(B(14), hr[4], 2 * C_DS)
                add(B(11), hr[6], 2 * C_DS)
                add(B(13), hr[7], 2 * C_DS)
                add(B(15), hr[8], 2 * C_DS)
            pos = [B(10), B(11), B(12), B(13), B(14), B(15)]
            k = 0
            for fn, cost in dm:
                add(pos[min(k // 2, 5)] if len(dm) <= 12 else pos[min(k // 3, 5)], fn, cost); k += 1
            zs = zinit[c * 9:(c + 1) * 9] if c < 17 else zinit[17 * 9:]
            interleave(slots, fixed, zs, 0, B(8))
        for db in range(4):
            for qb in range(2):
                acc = ACC(db, qb)
                for r in range(16): g.valu('v_mul_f32', acc[r], sSC, acc[r])
                for sp in range(2):
                    for k in range(4):
                        g.valu('v_cvt_pk_bf16_f32', acc[8 * sp + 2 * k], acc[8 * sp + 2 * k], acc[8 * sp + 2 * k + 1])
                    for k in range(4):
                        g.valu('v_accvgpr_write_b32', QF(qb, 2 * db + sp)[k], acc[8 * sp + 2 * k])
        for e in range(8):
            acc = ACX(e)
            for r in range(4): g.valu('v_mul_f32', acc[r], sSC, acc[r])
            for k in range(2): g.valu('v_cvt_pk_bf16_f32', acc[2 * k], acc[2 * k], acc[2 * k + 1])
            for k in range(2): g.valu('v_accvgpr_write_b32', QXF(e >> 1)[2 * (e & 1) + k], acc[2 * k])

    def attn_addr(self):
        g, mha = self.g, self.mha
        l = vLANE; t0, t1, t2, t3 = vT
        u0, u1, u2, u3, u4 = V(231), V(232), V(233), V(234), V(235)
        if mha: g.salu(f"s_mul_i32 {sT0}, {sP_}, 8704")
        else: g.salu(f"s_mov_b32 {sT0}, 0")
        g.valu('v_lshrrev_b32', t0, 2, u0)
        g.valu('v_mul_u32_u24', t0, 1088, t0)
        g.valu('v_lshl_add_u32', t0, u3, 8, t0)
        g.valu('v_add_u32', t0, sT0, t0)
        for v in range(2):
            g.valu('v_or_b32', t1, 2 * v, u1)
            g.valu('v_xor_b32', t1, t1, u3)
            g.valu('v_lshl_add_u32', aK[v], t1, 4, t0)
        g.salu(f"s_mul_i32 {sT1}, {sJ}, {4*1088}"); g.salu(f"s_add_u32 {sT1}, {sT1}, {sT0}")
        g.valu('v_mul_u32_u24', t0, 1088, u2)
        g.valu('v_lshl_add_u32', t0, u3, 8, t0)
        g.valu('v_xor_b32', t1, u4, u3)
        g.valu('v_lshl_add_u32', t0, t1, 4, t0)
        g.valu('v_add_u32', aKX, sT1, t0)
        if mha: g.salu(f"s_lshl_b32 {sT0}, {sP_}, 13"); g.salu(f"s_add_u32 {sT0}, {sT0}, {VBASE}")
        else: g.salu(f"s_mov_b32 {sT0}, {VBASE}")
        g.valu('v_lshrrev_b32', t3, 1, u2)
        g.valu('v_lshl_add_u32', t0, u1, 2, u2)
        g.valu('v_lshlrev_b32', t0, 7, t0)
        g.valu('v_and_b32', t1, 1, u4)
        g.valu('v_lshl_add_u32', t0, t1, 5, t0)
        g.valu('v_lshl_add_u32', t0, u3, 3, t0)
        g.valu('v_add_u32', t0, sT0, t0)
        for b in range(2):
            g.valu('v_xor_b32', t2, b, t3)
            g.valu('v_lshl_add_u32', aV[b], t2, 6, t0)
        g.salu(f"s_lshl_b32 {sT1}, {sJ}, 12"); g.salu(f"s_add_u32 {sT1}, {sT1}, {sT0}")
        g.valu('v_lshl_add_u32', t0, t1, 2, u2)
        g.valu('v_lshlrev_b32', t0, 7, t0)
        g.valu('v_lshrrev_b32', t2, 1, u4)
        g.valu('v_lshl_add_u32', t0, t2, 11, t0)
        g.valu('v_lshl_add_u32', t0, u3, 4, t0)
        g.valu('v_add_u32', t0, sT1, t0)
        for b in range(2):
            g.valu('v_xor_b32', t2, b, t3)
            g.valu('v_lshl_add_u32', aVX[b], t2, 6, t0)
        g.valu('v_xor_b32', t0, 32, l); g.valu('v_lshlrev_b32', vBP32, 2, t0)
        g.valu('v_xor_b32', t0, 16, l); g.valu('v_lshlrev_b32', vBP16, 2, t0)
        for qb in range(2):
            for r in range(16): g.valu('v_mov_b32', NM(qb)[r], 0)
        for r in range(4): g.valu('v_mov_b32', NMX[r], 0)
        for x in LL: g.valu('v_mov_b32', x, 0)

    def rdK(self, t, ds): self.g.ds_read('ds_read_b128', KF(ds), aK[ds & 1], KBASE + KSLOT * (t & 3) + (ds >> 1) * 64)
    def rdKX(self, t, d): self.g.ds_read('ds_read_b128', KXF(d), aKX, KBASE + KSLOT * (t & 3) + d * 64)
    def rdV(self, t, i):
        ks, db = i >> 2, i & 3
        half, b = db >> 1, db & 1
        for u in range(2):
            self.g.ds_read('ds_read_b64_tr_b16', VF(i).sub(2 * u, 2), aV[b], VSLOT * (t & 3) + (2 * ks + u) * 2048 + half * 1024)
    def rdVX(self, t, e):
        ds, e0 = e >> 1, e & 1
        half, b = ds >> 1, ds & 1
        self.g.ds_read('ds_read_b64_tr_b16', VXF(e), aVX[b], VSLOT * (t & 3) + half * 1024 + e0 * 8)
    def qk_slots(self, t):
        g = self.g; par = t & 1
        slots = []; idx = {}
        for ds in range(8):
            for qb in range(2):
                Cop = NM(qb) if ds == 0 else SS(par, qb)
                idx[('Q', 2 * ds + qb)] = len(slots)
                slots.append((lambda ds=ds, qb=qb, Cop=Cop: g.mfma('32x32x16', SS(par, qb), KF(ds), QF(qb, ds), Cop), 24))
            if ds & 1:
                d = ds >> 1
                Cx = NMX if d == 0 else SX(par)
                idx[('QX', d)] = len(slots)
                slots.append((lambda d=d, Cx=Cx: g.mfma('16x16x32', SX(par), KXF(d), QXF(d), Cx), 8))
        return slots, idx
    def pv_slots(self, t):
        g = self.g; par = t & 1
        slots = []; idx = {}
        for i in range(8):
            ks, db = i >> 2, i & 3
            for qb in range(2):
                idx[('B', 2 * i + qb)] = len(slots)
                slots.append((lambda i=i, ks=ks, db=db, qb=qb: g.mfma('32x32x16', OA(qb, db), VF(i), PP(par, qb, ks), OA(qb, db)), 24))
            idx[('PX', i)] = len(slots)
            slots.append((lambda e=i: g.mfma('16x16x16', OXA(e), VXF(e), PX(par), OXA(e)), 8))
        return slots, idx
    def softmax_stream(self, par):
        g = self.g
        groups = []
        for ks in range(2):
            for qb in range(2):
                for k in range(4):
                    r = 8 * ks + 2 * k
                    groups.append((SS(par, qb)[r], SS(par, qb)[r + 1], PP(par, qb, ks)[k], SUM[qb], ks == 0 and k == 0))
            if ks == 0:
                for k in range(2):
                    groups.append((SX(par)[2 * k], SX(par)[2 * k + 1], PX(par)[k], SUM[2], k == 0))
        st = []
        def fin(n):
            a, b, p, s, first = groups[n]
            ta, tb = TMP(2 * n), TMP(2 * n + 1)
            if first:
                st.append((lambda: g.valu('v_add_f32', s, ta, tb), C_VALU))
            else:
                st.append((lambda: g.valu('v_add_f32', s, s, ta), C_VALU))
                st.append((lambda: g.valu('v_add_f32', s, s, tb), C_VALU))
            st.append((lambda: g.valu('v_cvt_pk_bf16_f32', p, ta, tb), C_VOP3))
        for n, (a, b, p, s, first) in enumerate(groups):
            st.append((lambda a=a, n=n: g.valu('v_exp_f32', TMP(2 * n), a), C_TRANS))
            st.append((lambda b=b, n=n: g.valu('v_exp_f32', TMP(2 * n + 1), b), C_TRANS))
            if n >= 1: fin(n - 1)
        fin(len(groups) - 1)
        return st
    def check(self, par):
        g = self.g
        stub = g.newlabel(f"L{self.tag}_stub"); ret = g.newlabel(f"L{self.tag}_ret")
        self.rets.append((stub, ret, par))
        g.valu('v_max3_f32', vMX, SUM[0], SUM[1], SUM[2])
        g.raw(f"v_cmp_lt_f32 vcc, {sTHR}, {vMX}", 'valu', [sTHR, vMX], [('vcc', 0)], meta='v_cmp')
        g.branch(f"s_cbranch_vccnz {stub}")
        g.label(ret)
        for i in range(3): g.valu('v_add_f32', LL[i], LL[i], SUM[i])

    def body(self, t, in_loop, dmas, do_qk=True, do_sm=True, vwait=None, next_v=True, bar=True):
        g = self.g
        xs, xi = self.pv_slots(t)
        if do_qk: ys, yi = self.qk_slots(t + 2)
        else: ys, yi = [], {}
        nx = len(xs)
        slots = xs + ys
        fixed = {}
        def add(s, fn, cost): fixed.setdefault(s, []).append((fn, cost))
        B = lambda i: xi[('B', i)]; PXs = lambda e: xi[('PX', e)]
        Q = lambda i: nx + yi[('Q', i)]
        for i in range(4, 8):
            add(B(2 * (i - 4) + 1), lambda i=i: self.rdV(t, i), 2 * C_DS)
            add(B(2 * (i - 4) + 2), lambda i=i: self.rdVX(t, i), C_DS)
        if bar:
            def barf():
                if vwait: vwait()
                g.barrier()
            add(B(8), barf, 8)
        if do_qk:
            for ds in range(4):
                add(B(9 + 2 * ds), lambda ds=ds: self.rdK(t + 2, ds), C_DS)
                add(B(10 + 2 * ds) if ds < 3 else B(15), lambda ds=ds: self.rdKX(t + 2, ds), C_DS)
            for ds in range(4, 8):
                add(Q(2 * (ds - 4) + 1), lambda ds=ds: self.rdK(t + 2, ds), C_DS)
            if next_v:
                for i in range(4):
                    add(Q(8 + 2 * i + 1), lambda i=i: self.rdV(t + 1, i), 2 * C_DS)
                    add(Q(8 + 2 * i), lambda i=i: self.rdVX(t + 1, i), C_DS)
            dpos = [Q(0), Q(2), Q(4), Q(6), Q(8), Q(10), Q(12), Q(14)]
            endslot = Q(13)
        else:
            if next_v:
                for i in range(4):
                    add(B(2 * (4 + i) + 1), lambda i=i: self.rdV(t + 1, i), 2 * C_DS)
                    add(PXs(4 + i), lambda i=i: self.rdVX(t + 1, i), C_DS)
            dpos = [B(9), B(10), B(11), B(12), B(13), B(14), B(15)]
            endslot = len(slots) - 1
        k = 0
        for fn, cost in dmas:
            add(dpos[min(k, len(dpos) - 1)], fn, cost)
            if cost >= C_DMA: k += 1
        par = (t + 1) & 1
        if do_sm:
            stream = self.softmax_stream(par)
            stream.append((lambda: self.check(par), 6 * C_VALU))
            interleave(slots, fixed, stream, 2, endslot)
        else:
            interleave(slots, fixed, [], 0, len(slots) - 1)

    def attention(self):
        g = self.g
        self.attn_addr()
        g.wait_vm(('K', 0), ('K', 1), ('V', 0)); g.barrier()
        for t in range(2):
            ys, yi = self.qk_slots(t)
            fixed = {}
            def add(s, fn, cost): fixed.setdefault(s, []).append((fn, cost))
            Q = lambda i: yi[('Q', i)]
            if t == 0:
                for ds in range(4): self.rdK(0, ds)
                for d in range(4): self.rdKX(0, d)
            for ds in range(4, 8):
                add(Q(2 * (ds - 4) + 1), lambda ds=ds: self.rdK(t, ds), C_DS)
            if t == 0:
                for ds in range(4):
                    add(Q(8 + 2 * ds + 1), lambda ds=ds: self.rdK(1, ds), C_DS)
                for d in range(4):
                    add(yi[('QX', d)], lambda d=d: self.rdKX(1, d), C_DS)
            else:
                for i in range(4):
                    add(Q(8 + 2 * i + 1), lambda i=i: self.rdV(0, i), 2 * C_DS)
                    add(Q(8 + 2 * i), lambda i=i: self.rdVX(0, i), C_DS)
            interleave(ys, fixed, [], 0, len(ys) - 1)
        g.barrier()
        self.run(self.kv_pre('K', 4))
        stub = g.newlabel(f"L{self.tag}_stub"); ret = g.newlabel(f"L{self.tag}_ret")
        self.rets.append((stub, ret, 0))
        g.salu(f"s_mov_b32 {sFIRST}, 1")
        g.branch(f"s_branch {stub}")
        g.label(ret)
        g.salu(f"s_mov_b32 {sFIRST}, 0")
        for i in range(3): g.valu('v_add_f32', LL[i], LL[i], SUM[i])
        g.wait_lgkm0()
        g.salu(f"s_mov_b32 {sKOFF}, {5*8192}")
        g.salu(f"s_mov_b32 {sLOOP}, 7")
        N = 2 * self.nk
        def loop_bodies(t0):
            for t in range(t0, t0 + 4):
                dm = self.k_dma((t + 1) & 3, ('K', t + 5), sKOFF) + self.v_dma((t + 3) & 3, ('V', t + 3), sKOFF)
                dm.append((lambda: g.salu(f"s_add_u32 {sKOFF}, {sKOFF}, 8192"), C_SALU))
                self.body(t, True, dm, vwait=lambda: g.wait_vm_n(N))
        lab = f"L{self.tag}_loop"
        g.label(lab)
        start = len(g.ins)
        pend0 = list(g.lds_pending)
        nrets = len(self.rets); nl = g.nlabel
        loop_bodies(0)
        txt1 = [i.text for i in g.ins[start:]]
        end1 = len(g.ins)
        self.loop_range = (start, end1)
        save_ins = g.ins[:]; save_rets = self.rets[:]; save_nl = g.nlabel; save_vm = (g.vm_log[:], g.vm_done)
        g.nlabel = nl
        loop_bodies(0)
        txt2 = [i.text for i in g.ins[end1:]]
        pend_end = [(d, i - end1) for d, i in g.lds_pending]
        if txt1 != txt2:
            second = g.ins[end1:]
            g.ins = save_ins[:start] + second
            g.lds_pending = [(d, i + start) for d, i in pend_end]
            self.rets = save_rets
            self.loop_range = (start, len(g.ins))
        else:
            g.ins = save_ins
            g.lds_pending = [(d, i + start) for d, i in pend_end]
            self.rets = save_rets
        g.nlabel = save_nl
        g.vm_log, g.vm_done = save_vm
        g.salu(f"s_sub_u32 {sLOOP}, {sLOOP}, 1")
        g.salu(f"s_cmp_lg_u32 {sLOOP}, 0")
        g.branch(f"s_cbranch_scc1 {lab}")
        fix = []
        for tok in g.vm_log[-4 * N:]:
            fix.append((tok[0], tok[1] + 24))
        g.vm_log = g.vm_log[:-4 * N] + fix
        g.vm_done = len(g.vm_log) - N - (N if False else 0)
        g.vm_done = len(g.vm_log) - 2 * N
        self.wo_next = 0
        self.body(28, False, self.v_dma(31 & 3, ('V', 31), sKOFF) + self.wo_dma(0) + self.wo_dma(1),
                  vwait=lambda: g.wait_vm(('K', 30), ('V', 29), ('K', 32)))
        self.body(29, False, self.wo_dma(2) + self.wo_dma(3), vwait=lambda: g.wait_vm(('K', 31), ('V', 30)))
        self.body(30, False, self.wo_dma(4), do_qk=False, vwait=lambda: g.wait_vm(('V', 31)))
        self.body(31, False, [], do_qk=False, do_sm=False, next_v=False, bar=False)

    def wo_dma(self, n):
        g = self.g
        ps, kc = n // 8, n % 8
        fns = []
        if n == 0:
            fns.append((self.wo_voff, 10 * C_VALU))
        fns.append((lambda: g.salu(f"s_mov_b32 {sT2}, {kc*32*1152 + ps*384}"), C_SALU))
        fns.append((lambda: g.raw(f"s_add_u32 m0, {sMO}, {WSL[n % 6]}", 'salu', [sMO], [('m0', 0)]), C_SALU))
        for seg in range(3):
            fns.append((lambda seg=seg: g.dma(self.dO[seg], srdWO, sT2, seg * 1024, ('W', n), self.wflags), C_DMA))
        return fns
    def wo_voff(self):
        g = self.g; l = vLANE; t0, t1, t2, t3 = vT
        self.dO = [V(221), V(222), V(223)]
        g.valu('v_bfe_u32', t0, l, 4, 1)
        g.valu('v_lshlrev_b32', t0, 2, t0)
        g.valu('v_and_b32', t1, 7, l)
        g.valu('v_xor_b32', t0, t0, t1)
        g.valu('v_lshlrev_b32', t0, 4, t0)
        g.valu('v_lshrrev_b32', t1, 3, l)
        g.valu('v_mul_u32_u24', t1, 1152, t1)
        g.valu('v_add_u32', t0, t0, t1)
        g.salu(f"s_mul_i32 {sT0}, {sW}, 9216")
        g.valu('v_add_u32', t0, sT0, t0)
        for seg in range(3):
            g.valu('v_add_u32', self.dO[seg], 2048 + seg * (128 - 1024), t0)

    def handlers(self):
        g = self.g
        for par in range(2):
            hl = f"L{self.tag}_H{par}"
            g2 = g
            g.lds_pending = []
            g.label(hl)
            g.nop(32)
            g.wait_lgkm0()
            d, f, tt, tu = vH
            blocks = [(SS(par, 0), SS(1 - par, 0), NM(0), [PP(par, 0, 0), PP(par, 0, 1)], SUM[0], LL[0], [OA(0, db) for db in range(4)], [vBP32]),
                      (SS(par, 1), SS(1 - par, 1), NM(1), [PP(par, 1, 0), PP(par, 1, 1)], SUM[1], LL[1], [OA(1, db) for db in range(4)], [vBP32]),
                      (SX(par), SX(1 - par), NMX, [PX(par)], SUM[2], LL[2], [OXA(e) for e in range(8)], [vBP16, vBP32])]
            for cur, nxt, nm, ps, s, ll, oa, hops in blocks:
                n = cur.n
                g.valu('v_max_f32', d, cur[0], cur[1])
                for r in range(2, n, 2): g.valu('v_max3_f32', d, d, cur[r], cur[r + 1])
                for hp in hops:
                    g.bpermute(tt, hp, d)
                    g.valu('v_max_f32', d, d, tt)
                skip = g.newlabel(f"L{self.tag}_hs")
                g.salu(f"s_cmp_eq_u32 {sFIRST}, 1")
                g.branch(f"s_cbranch_scc1 {skip}")
                g.valu('v_max_f32', d, 0, d)
                g.valu('v_sub_f32', f, 0, d)
                g.valu('v_exp_f32', f, f)
                g.nop(1)
                g.valu('v_mul_f32', ll, ll, f)
                for o in oa:
                    for r in range(o.n):
                        x = TMP(r)
                        g.valu('v_accvgpr_read_b32', x, o[r])
                        g.valu('v_mul_f32', x, x, f)
                        g.valu('v_accvgpr_write_b32', o[r], x)
                g.label(skip)
                for r in range(n):
                    g.valu('v_sub_f32', nm[r], nm[r], d)
                    g.valu('v_sub_f32', nxt[r], nxt[r], d)
                    g.valu('v_sub_f32', cur[r], cur[r], d)
                pregs = []
                for p in ps: pregs += [p[k] for k in range(p.n)]
                for k in range(n // 2):
                    g.valu('v_exp_f32', tt, cur[2 * k]); g.valu('v_exp_f32', tu, cur[2 * k + 1])
                    g.nop(1)
                    if k == 0: g.valu('v_add_f32', s, tt, tu)
                    else:
                        g.valu('v_add_f32', s, s, tt); g.valu('v_add_f32', s, s, tu)
                    g.valu('v_cvt_pk_bf16_f32', pregs[k], tt, tu)
            g.nop(4)
            mine = [(i, r) for i, (st, r, p) in enumerate(self.rets) if p == par]
            for i, r in mine[:-1]:
                g.salu(f"s_cmp_eq_u32 {sRET}, {i}")
                g.branch(f"s_cbranch_scc1 {r}")
            g.branch(f"s_branch {mine[-1][1]}")
        for i, (st, r, p) in enumerate(self.rets):
            g.label(st)
            g.salu(f"s_mov_b32 {sRET}, {i}")
            g.branch(f"s_branch L{self.tag}_H{p}")

    def oproj(self):
        g = self.g
        l = vLANE; t0, t1, t2, t3 = vT
        u0, u1, u2, u3, u4 = V(231), V(232), V(233), V(234), V(235)
        inv = [V(224), V(225)]
        for qb in range(2):
            g.bpermute(t0, vBP32, LL[qb])
            g.valu('v_add_f32', LL[qb], LL[qb], t0)
            g.valu('v_rcp_f32', inv[qb], LL[qb])
        g.bpermute(t0, vBP16, LL[2]); g.valu('v_add_f32', LL[2], LL[2], t0)
        g.bpermute(t0, vBP32, LL[2]); g.valu('v_add_f32', LL[2], LL[2], t0)
        aL16 = V(226)
        g.valu('v_lshlrev_b32', aL16, 4, l)
        aEXw = V(227)
        g.salu(f"s_lshl_b32 {sT0}, {sW}, 14"); g.salu(f"s_add_u32 {sT0}, {sT0}, {EX}")
        g.valu('v_add_u32', aEXw, sT0, aL16)
        aMSw = V(228); aMSr = V(229); aMLw = V(230); aMLr = V(236)
        g.salu(f"s_lshl_b32 {sT0}, {sW}, 12"); g.salu(f"s_add_u32 {sT0}, {sT0}, {MS}")
        g.valu('v_add_u32', aMSw, sT0, aL16)
        g.salu(f"s_xor_b32 {sT1}, {sW}, 1"); g.salu(f"s_lshl_b32 {sT0}, {sT1}, 12"); g.salu(f"s_add_u32 {sT0}, {sT0}, {MS}")
        g.valu('v_add_u32', aMSr, sT0, aL16)
        g.valu('v_lshlrev_b32', t0, 3, l)
        g.salu(f"s_lshl_b32 {sT0}, {sW}, 9"); g.salu(f"s_add_u32 {sT0}, {sT0}, {MS + 16384}")
        g.valu('v_add_u32', aMLw, sT0, t0)
        g.salu(f"s_lshl_b32 {sT0}, {sT1}, 9"); g.salu(f"s_add_u32 {sT0}, {sT0}, {MS + 16384}")
        g.valu('v_add_u32', aMLr, sT0, t0)
        g.wait_lgkm0(); g.barrier()
        OX = V(128, 32)
        nmx0 = V(183)
        g.valu('v_mov_b32', nmx0, NMX[0])
        for e in range(8):
            for r in range(4): g.valu('v_accvgpr_read_b32', OX[4 * e + r], OXA(e)[r])
        lj1 = g.newlabel(f"L{self.tag}_j1"); ljd = g.newlabel(f"L{self.tag}_jd")
        own = V(160, 16)
        g.salu(f"s_cmp_eq_u32 {sJ}, 1")
        g.branch(f"s_cbranch_scc1 {lj1}")
        for k in range(4): g.ds_write('ds_write_b128', aMSw, OX.sub(16 + 4 * k, 4), k * 1024)
        for k in range(16): g.valu('v_mov_b32', own[k], OX[k])
        g.branch(f"s_branch {ljd}")
        g.label(lj1)
        for k in range(4): g.ds_write('ds_write_b128', aMSw, OX.sub(4 * k, 4), k * 1024)
        for k in range(16): g.valu('v_mov_b32', own[k], OX[16 + k])
        g.label(ljd)
        ml = V(176, 2)
        g.valu('v_mov_b32', ml[0], nmx0); g.valu('v_mov_b32', ml[1], LL[2])
        g.ds_write('ds_write_b64', aMLw, ml, 0)
        for qb in range(2):
            for db in range(4):
                tmp = V(16 * ((qb * 4 + db) & 3), 16)
                for r in range(16): g.valu('v_accvgpr_read_b32', tmp[r], OA(qb, db)[r])
                for r in range(16): g.valu('v_mul_f32', tmp[r], tmp[r], inv[qb])
                pk = V(64 + 8 * ((qb * 4 + db) & 3), 8)
                for k in range(8): g.valu('v_cvt_pk_bf16_f32', pk[k], tmp[2 * k], tmp[2 * k + 1])
                for sp in range(2):
                    g.ds_write('ds_write_b128', aEXw, pk.sub(4 * sp, 4), qb * 8192 + (2 * db + sp) * 1024)
                if self.o.get('dump') == 'o':
                    for sp in range(2):
                        g.salu(f"s_mov_b32 {sT3}, {qb * 8192 + (2 * db + sp) * 1024}")
                        g.salu(f"s_lshl_b32 {sT0}, {sW}, 14"); g.salu(f"s_add_u32 {sT3}, {sT3}, {sT0}")
                        g.vstore('buffer_store_dwordx4', pk.sub(4 * sp, 4), aL16, srdD, sT3, 0, 'dump')
        g.wait_lgkm0(); g.barrier()
        oth = V(128, 16); pml = V(178, 2)
        g.ds_read('ds_read_b64', pml, aMLr, 0)
        for k in range(4): g.ds_read('ds_read_b128', oth.sub(4 * k, 4), aMSr, k * 1024)
        nM, fa, fb = V(180), V(181), V(182)
        g.valu('v_min_f32', nM, nmx0, pml[0])
        g.valu('v_sub_f32', fa, nM, nmx0); g.valu('v_sub_f32', fb, nM, pml[0])
        g.valu('v_exp_f32', fa, fa); g.valu('v_exp_f32', fb, fb)
        g.nop(1)
        g.valu('v_mul_f32', t0, fa, LL[2])
        g.valu('v_fmac_f32', t0, fb, pml[1])
        g.valu('v_rcp_f32', t0, t0)
        g.nop(1)
        g.valu('v_mul_f32', fa, fa, t0); g.valu('v_mul_f32', fb, fb, t0)
        for k in range(16):
            g.valu('v_mul_f32', own[k], own[k], fa)
            g.valu('v_fmac_f32', own[k], oth[k], fb)
        pkx = V(184, 8)
        for k in range(8): g.valu('v_cvt_pk_bf16_f32', pkx[k], own[2 * k], own[2 * k + 1])
        aXw = V(237)
        g.salu(f"s_lshl_b32 {sT0}, {sW}, 11"); g.salu(f"s_add_u32 {sT0}, {sT0}, {EXX}")
        g.valu('v_add_u32', aXw, sT0, aL16)
        for s in range(2): g.ds_write('ds_write_b128', aXw, pkx.sub(4 * s, 4), s * 1024)
        if self.o.get('dump') == 'o':
            for s in range(2):
                g.salu(f"s_lshl_b32 {sT3}, {sW}, 11"); g.salu(f"s_add_u32 {sT3}, {sT3}, {65536 + s * 1024}")
                g.vstore('buffer_store_dwordx4', pkx.sub(4 * s, 4), aL16, srdD, sT3, 0, 'dump')
        aO = [V(238), V(239), V(240)]; aOX = [V(241), V(242), V(243)]; aB = V(244); aBX = V(245)
        vPo = V(246); vPx = V(247)
        w0 = WSL[0]
        g.valu('v_lshrrev_b32', t3, 1, u2)
        g.valu('v_lshl_add_u32', t0, u1, 2, u2); g.valu('v_lshlrev_b32', t0, 7, t0)
        g.valu('v_and_b32', t1, 1, u4); g.valu('v_lshl_add_u32', t0, t1, 5, t0)
        g.valu('v_and_b32', t1, 1, u3); g.valu('v_lshl_add_u32', t0, t1, 4, t0)
        g.valu('v_lshrrev_b32', t1, 1, u3); g.valu('v_lshl_add_u32', t0, t1, 3, t0)
        for i in range(3):
            g.salu(f"s_mul_i32 {sT0}, {sP_}, 3"); g.salu(f"s_add_u32 {sT0}, {sT0}, {i}")
            g.salu(f"s_and_b32 {sT1}, {sT0}, 1"); g.salu(f"s_lshr_b32 {sT0}, {sT0}, 1"); g.salu(f"s_lshl_b32 {sT0}, {sT0}, 10")
            g.salu(f"s_add_u32 {sT0}, {sT0}, {w0}")
            g.valu('v_xor_b32', t1, sT1, t3)
            g.valu('v_lshl_add_u32', t1, t1, 6, t0)
            g.valu('v_add_u32', aO[i], sT0, t1)
        g.valu('v_mul_u32_u24', t0, 3072, u4)
        g.valu('v_lshl_add_u32', t0, u2, 7, t0)
        g.valu('v_lshl_add_u32', t0, u3, 3, t0)
        for i in range(3):
            g.salu(f"s_mul_i32 {sT0}, {sW}, 3"); g.salu(f"s_add_u32 {sT0}, {sT0}, {i}")
            g.salu(f"s_bfe_u32 {sT1}, {sT0}, 0x10001")
            g.salu(f"s_and_b32 {sT2}, {sT0}, 1"); g.salu(f"s_lshl_b32 {sT2}, {sT2}, 5")
            g.salu(f"s_lshr_b32 {sT0}, {sT0}, 2"); g.salu(f"s_lshl_b32 {sT0}, {sT0}, 10")
            g.salu(f"s_add_u32 {sT0}, {sT0}, {sT2}"); g.salu(f"s_add_u32 {sT0}, {sT0}, {w0}")
            g.valu('v_xor_b32', t1, sT1, t3)
            g.valu('v_lshl_add_u32', t1, t1, 6, t0)
            g.valu('v_add_u32', aOX[i], sT0, t1)
        g.salu(f"s_lshl_b32 {sT0}, {sJ}, 14"); g.salu(f"s_add_u32 {sT0}, {sT0}, {EX}")
        g.valu('v_add_u32', aB, sT0, aL16)
        g.valu('v_add_u32', aBX, EXX, aL16)
        g.salu(f"s_mul_i32 {sT0}, {sJ}, {2*18*2048}"); g.salu(f"s_mul_i32 {sT1}, {sP_}, {3*2048}"); g.salu(f"s_add_u32 {sT0}, {sT0}, {sT1}")
        g.valu('v_add_u32', vPo, sT0, aL16)
        g.salu(f"s_mul_i32 {sT0}, {sW}, {3*512}"); g.salu(f"s_add_u32 {sT0}, {sT0}, 147456")
        g.valu('v_lshlrev_b32', t0, 3, l)
        g.valu('v_add_u32', vPx, sT0, t0)
        def AC(ps, i, qb): return (V if True else A)(0, 1) and (V(96 * (ps & 1) + 32 * i + 16 * qb, 16) if (ps & 1) == 0 else A(32 * i + 16 * qb, 16))
        def ACX(ps, i): return V(96 + 4 * i, 4) if (ps & 1) == 0 else A(96 + 4 * i, 4)
        def OF(i): return V(112 + 4 * (i % 6), 4)
        def BF(i): return V(136 + 4 * (i & 3), 4)
        def OXF(i): return V(152 + 4 * (i % 3), 4)
        def BXF(n): return V(164 + 4 * (n & 1), 4)
        STG = V(172, 48)
        pflags = self.o.get('pflags', '')
        def rdO(n, k):
            s, i = k // 3, k % 3
            for u in range(2):
                g.ds_read('ds_read_b64_tr_b16', OF(6 * n + k).sub(2 * u, 2), aO[i], (2 * s + u) * 3072)
        def rdB(n, k):
            kc = n % 8; ph, kk = kc >> 2, kc & 3
            s, qb = k >> 1, k & 1
            g.ds_read('ds_read_b128', BF(k), aB, ph * 32768 + qb * 8192 + (2 * kk + s) * 1024)
        def rdOX(n, i):
            for u in range(2):
                g.ds_read('ds_read_b64_tr_b16', OXF(i).sub(2 * u, 2), aOX[i], u * 512)
        def rdBX(n):
            kc = n % 8
            g.ds_read('ds_read_b128', BXF(n), aBX, (kc >> 2) * 4096 + (kc & 3) * 1024)
        def bump(reg, n):
            d = WSL[(n + 1) % 6] - WSL[n % 6]
            g.valu('v_add_u32', reg, d & 0xffffffff, reg)
        def out_stream(ps):
            st = []
            inA = (ps & 1) == 1
            cnt = 0
            for i in range(3):
                for qb in range(2):
                    acc = AC(ps, i, qb)
                    tb = STG.sub(24 * (cnt & 1), 24); cnt += 1
                    src = acc
                    if inA:
                        for r in range(16): st.append((lambda r=r, tb=tb, acc=acc: g.valu('v_accvgpr_read_b32', tb[r], acc[r]), C_VOP3))
                        src = tb.sub(0, 16)
                    pk = tb.sub(16, 8)
                    for k in range(8): st.append((lambda k=k, pk=pk, src=src: g.valu('v_cvt_pk_bf16_f32', pk[k], src[2 * k], src[2 * k + 1]), C_VOP3))
                    def sto(pk=pk, i=i, qb=qb):
                        g.salu(f"s_mov_b32 {sT3}, {qb * 36864 + (6 * ps + i) * 2048}")
                        for s in range(2): g.vstore('buffer_store_dwordx4', pk.sub(4 * s, 4), vPo, srdP, sT3, s * 1024, 'st', pflags)
                    st.append((sto, 2 * C_DMA))
            tb = STG.sub(24 * (cnt & 1), 24)
            for i in range(3):
                acc = ACX(ps, i); src = acc
                if inA:
                    for r in range(4): st.append((lambda r=r, i=i, acc=acc: g.valu('v_accvgpr_read_b32', tb[4 * i + r], acc[r]), C_VOP3))
                    src = tb.sub(4 * i, 4)
                pk = tb.sub(16 + 2 * i, 2)
                for k in range(2): st.append((lambda k=k, pk=pk, src=src: g.valu('v_cvt_pk_bf16_f32', pk[k], src[2 * k], src[2 * k + 1]), C_VOP3))
            def stx():
                g.salu(f"s_mov_b32 {sT3}, {12 * ps * 512}")
                for i in range(3): g.vstore('buffer_store_dwordx2', tb.sub(16 + 2 * i, 2), vPx, srdP, sT3, i * 512, 'st', pflags)
            st.append((stx, 3 * C_DMA))
            return st
        g.wait_lgkm0(); g.wait_vm(('W', 0)); g.barrier()
        self.run(self.wo_dma(5))
        def head_reads(n):
            return [lambda: rdB(n, 0), lambda: rdB(n, 1), lambda: rdO(n, 0), lambda: rdO(n, 1), lambda: rdO(n, 2), lambda: rdBX(n)]
        for f in head_reads(0): f()
        NW = 24
        pending_out = []
        for n in range(NW):
            ps, kc = n // 8, n % 8
            slots = []; fixed = {}; idx = {}
            def add(s, fn, cost): fixed.setdefault(s, []).append((fn, cost))
            for s in range(2):
                for i in range(3):
                    for qb in range(2):
                        Cop = 0 if (kc == 0 and s == 0) else AC(ps, i, qb)
                        idx[('B', 6 * s + 2 * i + qb)] = len(slots)
                        slots.append((lambda s=s, i=i, qb=qb, Cop=Cop: g.mfma('32x32x16', AC(ps, i, qb), OF(6 * n + 3 * s + i), BF(2 * s + qb), Cop), 24))
                    if s == 1:
                        Cx = 0 if kc == 0 else ACX(ps, i)
                        idx[('X', i)] = len(slots)
                        slots.append((lambda i=i, Cx=Cx: g.mfma('16x16x32', ACX(ps, i), OXF(i), BXF(n), Cx), 8))
            B = lambda i: idx[('B', i)]
            add(B(0), lambda: rdB(n, 2), C_DS); add(B(0), lambda: rdB(n, 3), C_DS)
            add(B(1), lambda: rdO(n, 3), 2 * C_DS); add(B(2), lambda: rdO(n, 4), 2 * C_DS); add(B(3), lambda: rdO(n, 5), 2 * C_DS)
            add(B(4), lambda: rdOX(n, 0), 2 * C_DS); add(B(4), lambda: rdOX(n, 1), 2 * C_DS); add(B(5), lambda: rdOX(n, 2), 2 * C_DS)
            last = n == NW - 1
            if not last:
                def bar(n=n):
                    g.wait_vm(('W', n + 1)); g.barrier()
                add(B(6), bar, 8)
                add(B(6), lambda: [bump(r, n) for r in aO + aOX], 6 * C_VOP3)
                hr = head_reads(n + 1)
                add(B(7), hr[0], C_DS); add(B(7), hr[1], C_DS)
                add(B(8), hr[2], 2 * C_DS); add(B(9), hr[3], 2 * C_DS); add(B(10), hr[4], 2 * C_DS); add(B(11), hr[5], C_DS)
                if n >= 1 and n + 5 < NW:
                    k = 0
                    for fn, cost in self.wo_dma(n + 5):
                        add(B(8 + min(k, 3)), fn, cost)
                        if cost >= C_DMA: k += 1
            st = []
            if pending_out and kc < 6:
                m = (len(pending_out) + (5 - kc)) // (6 - kc)
                st, pending_out = pending_out[:m], pending_out[m:]
            s0 = 3 if kc == 0 else 0
            interleave(slots, fixed, st, s0, len(slots) - 1)
            if kc == 7: pending_out = out_stream(ps)
        for f, _ in pending_out: f()

    def gen(self):
        g = self.g
        g.label(f"L{self.tag}_start")
        self.setup()
        self.qproj()
        if self.o.get('dump') == 'q':
            aL16 = V(226)
            g.valu('v_lshlrev_b32', aL16, 4, vLANE)
            for n in range(20):
                for k in range(4): g.valu('v_accvgpr_read_b32', V(k), A(160 + 4 * n + k))
                g.salu(f"s_mul_i32 {sT3}, {sW}, {20*1024}"); g.salu(f"s_add_u32 {sT3}, {sT3}, {n*1024}")
                g.vstore('buffer_store_dwordx4', V(0, 4), aL16, srdD, sT3, 0, 'dump')
                g.nop(2)
            g.wait_vm_n(0)
            g.raw("s_endpgm", 'branch')
            return
        self.attention()
        self.oproj()
        g.raw("s_endpgm", 'branch')
        self.handlers()

def kd(name, vgpr, accum, sgpr=102):
    return f""".amdhsa_kernel {name}
  .amdhsa_next_free_vgpr {vgpr}
  .amdhsa_next_free_sgpr {sgpr}
  .amdhsa_accum_offset {accum}
  .amdhsa_group_segment_fixed_size 0
  .amdhsa_kernarg_size 104
  .amdhsa_user_sgpr_count 2
  .amdhsa_user_sgpr_kernarg_segment_ptr 1
  .amdhsa_system_sgpr_workgroup_id_x 1
.end_amdhsa_kernel
"""

def gen_k1(opts):
    head = Gen()
    g = head
    g.salu("s_cmp_ge_u32 s2, 256")
    g.branch("s_cbranch_scc1 L_exit")
    g.salu("s_load_dwordx16 s[16:31], s[0:1], 0")
    g.salu("s_load_dwordx8 s[32:39], s[0:1], 64")
    g.salu("s_load_dwordx2 s[40:41], s[0:1], 96")
    g.valu('v_lshrrev_b32', V(1), 6, V(0))
    g.valu('v_and_b32', vLANE, 63, V(0))
    g.valu('v_readfirstlane_b32', sW, V(1))
    g.salu(f"s_and_b32 {sT0}, s2, 7")
    g.salu(f"s_lshr_b32 {sT1}, s2, 3")
    g.salu(f"s_lshr_b32 {sB}, {sT1}, 2")
    g.salu(f"s_bfe_u32 {sT2}, {sT1}, 0x10001")
    g.salu(f"s_lshl_b32 {sHP}, {sT0}, 1")
    g.salu(f"s_add_u32 {sHP}, {sHP}, {sT2}")
    g.salu(f"s_lshr_b32 {sP_}, {sW}, 1")
    g.salu(f"s_and_b32 {sJ}, {sW}, 1")
    g.salu(f"s_and_b32 {sT1}, {sT1}, 1")
    g.salu("s_waitcnt lgkmcnt(0)")
    g.salu(f"s_cmp_eq_u32 {sT1}, 1")
    g.branch("s_cbranch_scc1 LB_start")
    txt = ""
    ins, n = hazard_fix(head.ins)
    head.ins = ins; txt += head.text()
    for mha in (False, True):
        g = Gen(age=opts.get('age', 10))
        k = K1(g, mha, opts)
        k.gen()
        ins, n = hazard_fix(g.ins, verbose=opts.get('verbose'))
        lab = f"L{k.tag}_loop:"
        st = [i for i, x in enumerate(ins) if x.text == lab]
        if st:
            st = st[0]
            en = [i for i, x in enumerate(ins) if x.text.startswith(f"s_cbranch_scc1 L{k.tag}_loop")][0]
            body = ins[st:en + 1]
            hazard_fix(body + body, insert=False)
            nn = sum(1 for x in body if x.kind == 'nop'); nw = sum(1 for x in body if x.kind == 'wait')
            print(f"; variant {k.tag}: total nops inserted {n}; loop instrs {len(body)} nops {nn} waits {nw}", file=sys.stderr)
        g.ins = ins
        txt += g.text()
    txt += "L_exit:\n    s_endpgm\n"
    return txt

def gen_k2(opts):
    g = Gen()
    g.salu("s_cmp_ge_u32 s2, 720")
    g.branch("s_cbranch_scc1 L2_exit")
    g.salu("s_load_dwordx2 s[4:5], s[0:1], 80")
    g.salu("s_load_dwordx2 s[6:7], s[0:1], 96")
    g.salu("s_waitcnt lgkmcnt(0)")
    g.salu("s_mov_b32 s8, s6"); g.salu("s_and_b32 s9, s7, 0xffff"); g.salu(f"s_mov_b32 s10, {256*PART_BYTES}"); g.salu("s_mov_b32 s11, 0x20000")
    g.salu("s_mov_b32 s12, s4"); g.salu("s_and_b32 s13, s5, 0xffff"); g.salu(f"s_mov_b32 s14, {8*144*1152*2}"); g.salu("s_mov_b32 s15, 0x20000")
    g.salu("s_cmp_ge_u32 s2, 576")
    g.branch("s_cbranch_scc1 L2_extra")
    lf = opts.get('k2flags', '')
    g.salu("s_mul_hi_u32 s16, s2, 0x71c71c8")
    g.salu("s_mul_i32 s17, s16, 36")
    g.salu("s_sub_u32 s17, s2, s17")
    g.valu('v_lshrrev_b32', V(1), 6, V(0))
    g.valu('v_and_b32', V(2), 63, V(0))
    g.valu('v_readfirstlane_b32', S(18), V(1))
    g.salu("s_lshl_b32 s17, s17, 2")
    g.salu("s_add_u32 s17, s17, s18")
    g.salu(f"s_mul_i32 s19, s16, {16*PART_BYTES}")
    g.salu("s_lshl_b32 s20, s17, 10")
    g.salu("s_add_u32 s19, s19, s20")
    g.valu('v_lshlrev_b32', V(3), 4, V(2))
    for hp in range(16):
        g.vload('buffer_load_dwordx4', V(16 + 4 * hp, 4), V(3), S(8, 4), S(19), 0, hp, lf)
        if hp < 15: g.salu(f"s_add_u32 s19, s19, {PART_BYTES}")
    g.salu("s_mul_hi_u32 s21, s17, 0x71c71c8")
    g.salu("s_mul_i32 s22, s21, 36"); g.salu("s_sub_u32 s22, s17, s22")
    g.salu("s_and_b32 s23, s16, 7"); g.salu("s_lshr_b32 s24, s16, 3")
    g.salu("s_mul_i32 s23, s23, 144"); g.salu("s_lshl_b32 s21, s21, 5"); g.salu("s_add_u32 s23, s23, s21")
    g.salu("s_mul_i32 s23, s23, 2304"); g.salu("s_mul_i32 s24, s24, 1152"); g.salu("s_add_u32 s23, s23, s24")
    g.salu("s_lshl_b32 s22, s22, 5"); g.salu("s_add_u32 s23, s23, s22")
    g.valu('v_and_b32', V(4), 31, V(2)); g.valu('v_mul_u32_u24', V(4), 2304, V(4))
    g.valu('v_lshrrev_b32', V(5), 5, V(2)); g.valu('v_lshl_add_u32', V(4), V(5), 4, V(4))
    acc = V(8, 8)
    for hp in range(16):
        g.wait_vm(hp)
        for k in range(4):
            x = V(16 + 4 * hp + k)
            if hp == 0:
                g.valu('v_lshlrev_b32', acc[2 * k], 16, x); g.valu('v_and_b32', acc[2 * k + 1], 0xffff0000, x)
            else:
                g.valu('v_lshlrev_b32', V(6), 16, x); g.valu('v_and_b32', V(7), 0xffff0000, x)
                g.valu('v_add_f32', acc[2 * k], acc[2 * k], V(6)); g.valu('v_add_f32', acc[2 * k + 1], acc[2 * k + 1], V(7))
    for k in range(4): g.valu('v_cvt_pk_bf16_f32', V(16 + k), acc[2 * k], acc[2 * k + 1])
    g.vstore('buffer_store_dwordx4', V(16, 4), V(4), S(12, 4), S(23), 0, 'o')
    g.raw("s_endpgm", 'branch')
    g.label("L2_extra")
    g.salu("s_sub_u32 s25, s2, 576")
    g.salu("s_mul_hi_u32 s16, s25, 0x1c71c71d")
    g.salu("s_mul_i32 s17, s16, 9"); g.salu("s_sub_u32 s17, s25, s17")
    g.valu('v_lshrrev_b32', V(1), 6, V(0))
    g.valu('v_and_b32', V(2), 63, V(0))
    g.valu('v_readfirstlane_b32', S(18), V(1))
    g.salu("s_lshl_b32 s17, s17, 2"); g.salu("s_add_u32 s17, s17, s18")
    g.salu(f"s_mul_i32 s19, s16, {16*PART_BYTES}")
    g.salu("s_lshl_b32 s20, s17, 9"); g.salu("s_add_u32 s19, s19, s20"); g.salu("s_add_u32 s19, s19, 147456")
    g.valu('v_lshlrev_b32', V(3), 3, V(2))
    for hp in range(16):
        g.vload('buffer_load_dwordx2', V(16 + 2 * hp, 2), V(3), S(8, 4), S(19), 0, ('x', hp), lf)
        if hp < 15: g.salu(f"s_add_u32 s19, s19, {PART_BYTES}")
    g.salu("s_and_b32 s23, s16, 7"); g.salu("s_lshr_b32 s24, s16, 3")
    g.salu("s_mul_i32 s23, s23, 144"); g.salu("s_add_u32 s23, s23, 128")
    g.salu("s_mul_i32 s23, s23, 2304"); g.salu("s_mul_i32 s24, s24, 1152"); g.salu("s_add_u32 s23, s23, s24")
    g.salu("s_lshl_b32 s22, s17, 5"); g.salu("s_add_u32 s23, s23, s22")
    g.valu('v_and_b32', V(4), 15, V(2)); g.valu('v_mul_u32_u24', V(4), 2304, V(4))
    g.valu('v_lshrrev_b32', V(5), 4, V(2)); g.valu('v_lshl_add_u32', V(4), V(5), 3, V(4))
    for hp in range(16):
        g.wait_vm(('x', hp))
        for k in range(2):
            x = V(16 + 2 * hp + k)
            if hp == 0:
                g.valu('v_lshlrev_b32', acc[2 * k], 16, x); g.valu('v_and_b32', acc[2 * k + 1], 0xffff0000, x)
            else:
                g.valu('v_lshlrev_b32', V(6), 16, x); g.valu('v_and_b32', V(7), 0xffff0000, x)
                g.valu('v_add_f32', acc[2 * k], acc[2 * k], V(6)); g.valu('v_add_f32', acc[2 * k + 1], acc[2 * k + 1], V(7))
    for k in range(2): g.valu('v_cvt_pk_bf16_f32', V(16 + k), acc[2 * k], acc[2 * k + 1])
    g.vstore('buffer_store_dwordx2', V(16, 2), V(4), S(12, 4), S(23), 0, 'o')
    g.label("L2_exit")
    g.raw("s_endpgm", 'branch')
    ins, n = hazard_fix(g.ins)
    g.ins = ins
    return g.text()

def build(opts):
    hdr = open('cdna_kernels/' + NAME + '.s.ref').read().split('; Override launch')[0]
    k1 = f"{NAME}_kernel"; k2 = "reduce_heads_kernel"
    out = hdr
    out += f"; @launch kernel={k1} grid=(256,1,1) block=(256,1,1) lds={LDS_BYTES}\n"
    if not opts.get('dump') == 'q':
        out += f"; @launch kernel={k2} grid=(720,1,1) block=(256,1,1) lds=0\n"
    out += '.amdgcn_target "amdgcn-amd-amdhsa--gfx950"\n.text\n'
    out += f".globl {k1}\n.p2align 8\n.type {k1},@function\n{k1}:\n" + gen_k1(opts)
    out += f".globl {k2}\n.p2align 8\n.type {k2},@function\n{k2}:\n" + gen_k2(opts)
    out += '.section .rodata,"a"\n.p2align 6\n' + kd(k1, 512, 256) + ".p2align 6\n" + kd(k2, 80, 80, 32)
    return out

if __name__ == '__main__':
    opts = {}
    outp = sys.argv[1]
    for a in sys.argv[2:]:
        k, v = a.split('=', 1)
        try: v = int(v)
        except ValueError: pass
        opts[k] = v
    open(outp, 'w').write(build(opts))
```

```python
import sys, math, struct
from asmgen import *

NAME = 'concat_heads__gqa_block_cached__mha_block_cached__near_ridge'
QSCALE = math.log2(math.e) / math.sqrt(128.0)
def f32hex(x): return '0x%08x' % struct.unpack('<I', struct.pack('<f', x))[0]

KSLOT = 17408; KBASE = 0
VSLOT = 16384; VBASE = 69632
LDS_BYTES = 163840
QST = [34816, 86016, 111616, 137216]
WSL = [135168, 147456, 0, 12288, 24576, 36864]
EX = 69632
EXX = 61440
MS = 36864
PART_BYTES = 165888

sW, sP_, sJ, sB, sHP = S(3), S(4), S(5), S(6), S(7)
sT0, sT1, sT2, sT3 = S(8), S(9), S(10), S(11)
srdX, srdWQ, srdK, srdV, srdWO, srdP = S(44, 4), S(48, 4), S(52, 4), S(56, 4), S(60, 4), S(64, 4)
sKOFF, sLOOP, sRET, sFIRST, sTHR = S(70), S(72), S(73), S(74), S(75)
sMK, sMV, sMX, sMW, sMO = S(76), S(77), S(78), S(79), S(82)
sEXM = S(80, 2)
sSC = S(83)
srdD = S(84, 4)

def SS(par, qb): return V(32 * par + 16 * qb, 16)
def NM(qb): return V(64 + 16 * qb, 16)
def PP(par, qb, ks): return V(96 + 16 * par + 8 * qb + 4 * ks, 4)
def SX(par): return V(128 + 4 * par, 4)
NMX = V(136, 4)
def PX(par): return V(140 + 2 * par, 2)
def KF(i): return V(144 + 4 * (i & 3), 4)
def VF(i): return V(160 + 4 * (i & 3), 4)
def KXF(i): return V(176 + 4 * (i & 3), 4)
def VXF(i): return V(192 + 2 * (i & 3), 2)
def TMP(i): return V(200 + (i & 7))
SUM = [V(208), V(209), V(210)]
LL = [V(211), V(212), V(213)]
vMX = V(214)
vH = [V(215), V(216), V(217), V(218)]
vBP32 = V(219); vBP16 = V(220)
aK = [V(238), V(239)]; aKX = V(240); aV = [V(241), V(242)]; aVX = [V(243), V(244)]
dK = [V(245), V(246), V(247), V(248)]; dV = [V(249), V(250)]
vLANE = V(251); vT = [V(252), V(253), V(254), V(255)]
def OA(qb, db): return A(64 * qb + 16 * db, 16)
def OXA(e): return A(128 + 4 * e, 4)
def QF(qb, ds): return A(160 + 32 * qb + 4 * ds, 4)
def QXF(ds32): return A(224 + 4 * ds32, 4)

C_VALU, C_VOP3, C_TRANS, C_DS, C_DMA, C_SALU = 4, 5, 8, 5, 16, 4

def interleave(slots, fixed, stream, s0, s1):
    n = len(slots)
    free = [0] * n
    for s in range(s0, s1 + 1):
        fc = sum(c for _, c in fixed.get(s, []))
        free[s] = max(2, slots[s][1] - fc)
    tot_free = sum(free); tot = sum(c for _, c in stream)
    scale = tot / tot_free if tot_free else 0
    budget = 0.0; k = 0
    for s in range(n):
        slots[s][0]()
        fx = list(fixed.get(s, []))
        for e, _ in fx: e()
        budget += free[s] * scale
        while k < len(stream) and (stream[k][1] * 0.5 <= budget or s == s1):
            stream[k][0](); budget -= stream[k][1]; k += 1
    assert k == len(stream)

class K1:
    def __init__(self, g, mha, opts):
        self.g, self.mha, self.o = g, mha, opts
        self.tag = 'B' if mha else 'A'
        self.nk = 4 if mha else 2
        self.kvflags = opts.get('kvflags', 'nt')
        self.wflags = opts.get('wflags', '')
        self.rets = []
    def lane_expr_setup(self):
        pass
    def k_dma(self, t_slot, token, soff):
        g = self.g
        fns = []
        def m0(): g.raw(f"s_add_u32 m0, {sMK}, {KBASE + KSLOT * t_slot}", 'salu', [sMK], [('m0', 0)])
        fns.append((m0, C_SALU))
        for i in range(self.nk):
            fns.append((lambda i=i: g.dma(dK[i], srdK, soff, i * 1088, token, self.kvflags), C_DMA))
        return fns
    def v_dma(self, t_slot, token, soff):
        g = self.g
        fns = []
        def m0(): g.raw(f"s_add_u32 m0, {sMV}, {VBASE + VSLOT * t_slot}", 'salu', [sMV], [('m0', 0)])
        fns.append((m0, C_SALU))
        for i in range(self.nk):
            fns.append((lambda i=i: g.dma(dV[i & 1], srdV, soff, i * 1024, token, self.kvflags), C_DMA))
        return fns
    def stamp(self, i):
        if not self.o.get('stamp'): return
        g = self.g
        g.salu("s_memrealtime s[14:15]")
        g.salu("s_memtime s[12:13]")
        g.wait_lgkm0()
        g.salu(f"s_mov_b32 s{88 + 2 * i}, s14")
        g.salu(f"s_mov_b32 s{89 + 2 * i}, s12")
    def stamp_out(self):
        if not self.o.get('stamp'): return
        g = self.g
        for k in range(14): g.valu('v_mov_b32', V(k), S(88 + k))
        g.valu('v_mov_b32', V(14), 0); g.valu('v_mov_b32', V(15), 0)
        g.valu('v_mov_b32', V(16), 0)
        g.salu(f"s_lshl_b32 {sT3}, {sW}, 6")
        g.salu("s_mov_b64 exec, 1")
        for k in range(4): g.vstore('buffer_store_dwordx4', V(4 * k, 4), V(16), srdD, sT3, 16 * k, 'dump')
    def run(self, fns):
        for f, _ in fns: f()

    def setup(self):
        g, mha = self.g, self.mha
        pb = 26 if mha else 16
        px, pk, pv, pwq, pwo = (S(pb + 2 * i, 2) for i in range(5))
        def mk_srd(srd, ptr, off_sgpr, bias, size):
            g.salu(f"s_add_u32 {srd[0]}, {ptr[0]}, {off_sgpr}")
            g.salu(f"s_addc_u32 {srd[1]}, {ptr[1]}, 0")
            if bias:
                g.salu(f"s_sub_u32 {srd[0]}, {srd[0]}, {bias}")
                g.salu(f"s_subb_u32 {srd[1]}, {srd[1]}, 0")
            g.salu(f"s_and_b32 {srd[1]}, {srd[1]}, 0xffff")
            if isinstance(size, int): g.salu(f"s_mov_b32 {srd[2]}, {size + bias}")
            else: g.salu(f"s_add_u32 {srd[2]}, {size}, {bias}")
            g.salu(f"s_mov_b32 {srd[3]}, 0x20000")
        g.salu(f"s_mul_i32 {sT0}, {sB}, 165888")
        mk_srd(srdX, px, sT0, 0, 165888)
        g.salu(f"s_lshl_b32 {sT0}, {sHP}, 9")
        g.salu(f"s_sub_u32 {sT1}, {576*8192}, {sT0}")
        mk_srd(srdWQ, pwq, sT0, 3072, sT1)
        if mha:
            g.salu(f"s_lshl_b32 {sT0}, {sB}, 5")
            g.salu(f"s_lshl_b32 {sT1}, {sHP}, 1")
            g.salu(f"s_add_u32 {sT0}, {sT0}, {sT1}")
            g.salu(f"s_add_u32 {sT0}, {sT0}, {sP_}")
        else:
            g.salu(f"s_lshl_b32 {sT0}, {sB}, 4")
            g.salu(f"s_add_u32 {sT0}, {sT0}, {sHP}")
        g.salu(f"s_lshl_b32 {sT0}, {sT0}, 18")
        mk_srd(srdK, pk, sT0, 192, 262144)
        mk_srd(srdV, pv, sT0, 16384 + 1024, 262144)
        g.salu(f"s_mul_i32 {sT0}, {sHP}, {256*1152}")
        mk_srd(srdWO, pwo, sT0, 2048, 256 * 1152)
        g.salu(f"s_lshl_b32 {sT0}, {sB}, 4")
        g.salu(f"s_add_u32 {sT0}, {sT0}, {sHP}")
        if mha: g.salu(f"s_add_u32 {sT0}, {sT0}, 128")
        g.salu(f"s_mul_i32 {sT0}, {sT0}, {PART_BYTES}")
        mk_srd(srdP, S(40, 2), sT0, 0, PART_BYTES)
        if self.o.get('dump') or self.o.get('stamp'):
            g.salu(f"s_lshl_b32 {sT0}, {sB}, 4")
            g.salu(f"s_add_u32 {sT0}, {sT0}, {sHP}")
            if mha: g.salu(f"s_add_u32 {sT0}, {sT0}, 128")
            g.salu(f"s_lshl_b32 {sT0}, {sT0}, 18")
            g.salu(f"s_add_u32 {sT0}, {sT0}, {64<<20}")
            mk_srd(srdD, S(40, 2), sT0, 0, 1 << 18)
        if mha:
            g.salu(f"s_mul_i32 {sMK}, {sP_}, 8704"); g.salu(f"s_mul_i32 {sT0}, {sJ}, 4352"); g.salu(f"s_add_u32 {sMK}, {sMK}, {sT0}")
            g.salu(f"s_lshl_b32 {sMV}, {sW}, 12")
        else:
            g.salu(f"s_mul_i32 {sMK}, {sW}, 2176")
            g.salu(f"s_lshl_b32 {sMV}, {sW}, 11")
        g.salu(f"s_lshl_b32 {sMX}, {sW}, 11")
        g.salu(f"s_lshl_b32 {sMW}, {sW}, 12"); g.salu(f"s_add_u32 {sMW}, {sMW}, 9216")
        g.salu(f"s_mul_i32 {sMO}, {sW}, 3072")
        g.salu(f"s_lshl_b32 {sT0}, {sW}, 4")
        g.salu(f"s_mov_b64 {sEXM}, 0xffff")
        g.salu(f"s_lshl_b64 {sEXM}, {sEXM}, {sT0}")
        g.salu(f"s_mov_b32 {sTHR}, {f32hex(1024.0)}")
        g.salu(f"s_mov_b32 {sSC}, {f32hex(QSCALE)}")
        t0, t1, t2, t3 = vT
        l = vLANE
        g.valu('v_lshrrev_b32', t0, 4, l)
        g.valu('v_and_b32', t1, 15, l)
        g.valu('v_xor_b32', t1, t0, t1)
        g.valu('v_lshlrev_b32', t1, 4, t1)
        g.valu('v_lshl_add_u32', t1, t0, 8, t1)
        if mha: g.salu(f"s_lshl_b32 {sT0}, {sJ}, 12")
        else: g.salu(f"s_lshl_b32 {sT0}, {sW}, 11")
        g.valu('v_add_u32', t1, sT0, t1)
        for i in range(self.nk):
            g.valu('v_add_u32', dK[i], 192 - 64 * i, t1)
        g.valu('v_and_b32', t2, 1, t0)
        g.valu('v_lshlrev_b32', t2, 2, t2)
        g.valu('v_and_b32', t3, 7, l)
        g.valu('v_xor_b32', t2, t2, t3)
        g.valu('v_lshlrev_b32', t2, 4, t2)
        g.valu('v_lshrrev_b32', t3, 3, l)
        g.valu('v_lshl_add_u32', t1, t3, 8, t2)
        g.valu('v_add_u32', t1, sT0, t1)
        g.valu('v_add_u32', dV[0], 1024, t1)
        g.valu('v_add_u32', dV[1], 128, t1)
        self.dX = [V(238), V(239), V(240)]; self.dW = [V(241), V(242), V(243), V(244)]
        g.valu('v_lshl_add_u32', t1, t3, 13, t2)
        g.salu(f"s_lshl_b32 {sT0}, {sW}, 16")
        g.valu('v_add_u32', t1, sT0, t1)
        for seg in range(4):
            g.valu('v_add_u32', self.dW[seg], 3072 + seg * (128 - 1024), t1)
        g.valu('v_and_b32', t1, 3, t0)
        g.valu('v_and_b32', t2, 3, l)
        g.valu('v_xor_b32', t1, t1, t2)
        g.valu('v_lshlrev_b32', t1, 4, t1)
        g.valu('v_lshrrev_b32', t2, 2, l)
        g.valu('v_mul_u32_u24', t2, 1152, t2)
        g.valu('v_add_u32', t1, t1, t2)
        g.valu('v_add_u32', self.dX[2], 8 * 18432, t1)
        g.salu(f"s_mul_i32 {sT0}, {sW}, {2*18432}")
        g.valu('v_add_u32', self.dX[0], sT0, t1)
        g.valu('v_add_u32', self.dX[1], 18432 - 1024, self.dX[0])

    def q_chunk_dma(self, c):
        g = self.g
        st = QST[(c + 2) % 4]
        tok = ('Q', c)
        fns = []
        fns.append((lambda: g.salu(f"s_mov_b32 {sT2}, {c*64}"), C_SALU))
        fns.append((lambda: g.raw(f"s_add_u32 m0, {sMX}, {st}", 'salu', [sMX], [('m0', 0)]), C_SALU))
        fns.append((lambda: g.dma(self.dX[0], srdX, sT2, 0, tok, self.wflags), C_DMA))
        fns.append((lambda: g.dma(self.dX[1], srdX, sT2, 1024, tok, self.wflags), C_DMA))
        def p8():
            g.raw(f"s_mov_b32 m0, {st + 8192}", 'salu', [], [('m0', 0)])
            g.salu(f"s_mov_b64 exec, {sEXM}")
            g.dma(self.dX[2], srdX, sT2, 0, tok, self.wflags)
            g.salu("s_mov_b64 exec, -1")
        fns.append((p8, C_DMA + 3 * C_SALU))
        fns.append((lambda: g.salu(f"s_mov_b32 {sT3}, {c*262144}"), C_SALU))
        fns.append((lambda: g.raw(f"s_add_u32 m0, {sMW}, {st}", 'salu', [sMW], [('m0', 0)]), C_SALU))
        for seg in range(4):
            fns.append((lambda seg=seg: g.dma(self.dW[seg], srdWQ, sT3, seg * 1024, tok, self.wflags), C_DMA))
        return fns

    def kv_pre(self, kind, t):
        g = self.g
        if kind == 'K':
            return [(lambda: g.salu(f"s_mov_b32 {sT1}, {t*8192}"), C_SALU)] + self.k_dma(t & 3, ('K', t), sT1)
        return [(lambda: g.salu(f"s_mov_b32 {sT1}, {(t+2)*8192}"), C_SALU)] + self.v_dma(t & 3, ('V', t), sT1)

    def qproj(self):
        g = self.g
        l = vLANE; t0, t1, t2, t3 = vT
        def ACC(db, qb): return V(16 * (2 * db + qb), 16)
        def ACX(e): return V(128 + 4 * e, 4)
        def WF(i): return V(160 + 4 * (i & 3), 4)
        def XB(i): return V(176 + 4 * (i & 3), 4)
        def XBX(c): return V(192 + 4 * (c & 1), 4)
        def WXF(i): return V(200 + 4 * (i & 3), 4)
        aXB = [V(224), V(225)]; aXX = V(226); aW = [V(227), V(228)]; aWX = [V(229), V(230)]
        u0, u1, u2, u3, u4 = V(231), V(232), V(233), V(234), V(235)
        for c in range(3): self.run(self.q_chunk_dma(c))
        for kind, t in (('K', 0), ('K', 1), ('V', 0)): self.run(self.kv_pre(kind, t))
        st0 = QST[2]
        g.valu('v_and_b32', u0, 31, l)
        g.valu('v_lshrrev_b32', u1, 5, l)
        g.valu('v_bfe_u32', u2, l, 2, 2)
        g.valu('v_and_b32', u3, 3, l)
        g.valu('v_lshrrev_b32', u4, 4, l)
        g.salu(f"s_lshl_b32 {sT0}, {sJ}, 12"); g.salu(f"s_add_u32 {sT0}, {sT0}, {st0}")
        for ks2 in range(2):
            g.valu('v_or_b32', t0, 2 * ks2, u1)
            g.valu('v_xor_b32', t0, t0, u2)
            g.valu('v_lshlrev_b32', t0, 4, t0)
            g.valu('v_lshl_add_u32', t0, u0, 6, t0)
            g.valu('v_add_u32', aXB[ks2], sT0, t0)
        g.valu('v_xor_b32', t0, u4, u2)
        g.valu('v_lshlrev_b32', t0, 4, t0)
        g.valu('v_and_b32', t1, 15, l)
        g.valu('v_lshl_add_u32', t0, t1, 6, t0)
        g.valu('v_add_u32', aXX, 8192 + st0, t0)
        g.salu(f"s_lshl_b32 {sT0}, {sP_}, 11"); g.salu(f"s_add_u32 {sT0}, {sT0}, {9216 + st0}")
        g.valu('v_lshlrev_b32', t0, 7, u2)
        g.valu('v_add_u32', t0, sT0, t0)
        g.valu('v_lshrrev_b32', t1, 1, u2)
        g.valu('v_and_b32', t2, 1, u3); g.valu('v_lshlrev_b32', t2, 4, t2)
        g.valu('v_lshrrev_b32', t3, 1, u3); g.valu('v_lshl_add_u32', t2, t3, 3, t2)
        g.valu('v_and_b32', t3, 1, u4); g.valu('v_lshl_add_u32', t2, t3, 5, t2)
        g.valu('v_lshl_add_u32', t2, u1, 12, t2)
        g.valu('v_add_u32', t2, t2, t0)
        for b in range(2):
            g.valu('v_xor_b32', t3, b, t1)
            g.valu('v_lshl_add_u32', aW[b], t3, 6, t2)
        g.valu('v_lshlrev_b32', t2, 4, u3)
        g.valu('v_lshl_add_u32', t2, u4, 12, t2)
        g.valu('v_add_u32', t2, t2, t0)
        for b in range(2):
            g.valu('v_xor_b32', t3, b, t1)
            g.valu('v_lshl_add_u32', aWX[b], t3, 6, t2)
        zinit = [(lambda i=i: g.valu('v_accvgpr_write_b32', A(i), 0), C_VOP3) for i in range(160)]
        def rdW(c, i):
            ks2, db = i >> 2, i & 3
            half, b = db >> 1, db & 1
            for u in range(2):
                g.ds_read('ds_read_b64_tr_b16', WF(8 * c + i).sub(2 * u, 2), aW[b], ks2 * 8192 + half * 1024 + u * 512)
        def rdXB(c, i):
            g.ds_read('ds_read_b128', XB(i), aXB[i >> 1], (i & 1) * 2048)
        def rdXX(c): g.ds_read('ds_read_b128', XBX(c), aXX, 0)
        def rdWX(c, e):
            ds, e0 = e >> 1, e & 1
            half, b = ds >> 1, ds & 1
            for u in range(2):
                g.ds_read('ds_read_b64_tr_b16', WXF(8 * c + e).sub(2 * u, 2), aWX[b], half * 1024 + u * 512 + e0 * 8)
        def bump(reg, c):
            d = QST[(c + 3) % 4] - QST[(c + 2) % 4]
            g.valu('v_add_u32', reg, d & 0xffffffff, reg)
        g.wait_vm(('Q', 0)); g.barrier()
        self.stamp(1)
        def head_reads(c):
            return [lambda: rdXB(c, 0), lambda: rdXB(c, 1), lambda: rdW(c, 0), lambda: rdW(c, 1), lambda: rdW(c, 2), lambda: rdXX(c), lambda: rdWX(c, 0), lambda: rdWX(c, 1), lambda: rdWX(c, 2)]
        for f in head_reads(0): f()
        NC = 18
        for c in range(NC):
            slots = []; fixed = {}
            def add(s, fn, cost): fixed.setdefault(s, []).append((fn, cost))
            sidx = {}
            for i in range(8):
                ks2, db = i >> 2, i & 3
                for qb in range(2):
                    Cop = 0 if (c == 0 and ks2 == 0) else ACC(db, qb)
                    sidx[('B', 2 * i + qb)] = len(slots)
                    slots.append((lambda db=db, qb=qb, ks2=ks2, i=i, Cop=Cop: g.mfma('32x32x16', ACC(db, qb), WF(8 * c + i), XB(2 * ks2 + qb), Cop), 24))
                e = i
                Cx = 0 if c == 0 else ACX(e)
                sidx[('X', e)] = len(slots)
                slots.append((lambda e=e, Cx=Cx: g.mfma('16x16x32', ACX(e), WXF(8 * c + e), XBX(c), Cx), 8))
            B = lambda i: sidx[('B', i)]; X = lambda e: sidx[('X', e)]
            add(B(0), lambda: rdW(c, 3), 2 * C_DS)
            add(B(0), lambda: rdXB(c, 2), C_DS); add(B(1), lambda: rdXB(c, 3), C_DS)
            add(B(1), lambda: rdWX(c, 3), 2 * C_DS)
            for i in range(4, 8):
                add(B(2 * (i - 4) + 2), lambda i=i: rdW(c, i), 2 * C_DS)
                add(B(2 * (i - 4) + 3), lambda i=i: rdWX(c, i), 2 * C_DS)
            last = (c == NC - 1)
            def bar():
                if not last: g.wait_vm(('Q', c + 1))
                g.barrier()
            add(B(9), bar, 8)
            if c + 3 < NC: dm = self.q_chunk_dma(c + 3)
            elif c == 15: dm = self.kv_pre('K', 2) + self.kv_pre('K', 3)
            elif c == 16: dm = self.kv_pre('V', 1)
            else: dm = self.kv_pre('V', 2)
            post = []
            if not last:
                for reg in aXB + [aXX] + aW + aWX:
                    post.append((lambda reg=reg: bump(reg, c), C_VOP3))
                hr = head_reads(c + 1)
                add(B(10), lambda post=post: [f() for f, _ in post], 7 * C_VOP3)
                add(B(10), hr[0], C_DS); add(B(10), hr[1], C_DS)
                add(B(11), hr[2], 2 * C_DS)
                add(B(12), hr[3], 2 * C_DS)
                add(B(12), hr[5], C_DS)
                add(B(14), hr[4], 2 * C_DS)
                add(B(11), hr[6], 2 * C_DS)
                add(B(13), hr[7], 2 * C_DS)
                add(B(15), hr[8], 2 * C_DS)
            pos = [B(10), B(11), B(12), B(13), B(14), B(15)]
            k = 0
            for fn, cost in dm:
                add(pos[min(k // 2, 5)] if len(dm) <= 12 else pos[min(k // 3, 5)], fn, cost); k += 1
            zs = zinit[c * 9:(c + 1) * 9] if c < 17 else zinit[17 * 9:]
            interleave(slots, fixed, zs, 0, B(8))
        for db in range(4):
            for qb in range(2):
                acc = ACC(db, qb)
                for r in range(16): g.valu('v_mul_f32', acc[r], sSC, acc[r])
                for sp in range(2):
                    for k in range(4):
                        g.valu('v_cvt_pk_bf16_f32', acc[8 * sp + 2 * k], acc[8 * sp + 2 * k], acc[8 * sp + 2 * k + 1])
                    for k in range(4):
                        g.valu('v_accvgpr_write_b32', QF(qb, 2 * db + sp)[k], acc[8 * sp + 2 * k])
        for e in range(8):
            acc = ACX(e)
            for r in range(4): g.valu('v_mul_f32', acc[r], sSC, acc[r])
            for k in range(2): g.valu('v_cvt_pk_bf16_f32', acc[2 * k], acc[2 * k], acc[2 * k + 1])
            for k in range(2): g.valu('v_accvgpr_write_b32', QXF(e >> 1)[2 * (e & 1) + k], acc[2 * k])

    def attn_addr(self):
        g, mha = self.g, self.mha
        l = vLANE; t0, t1, t2, t3 = vT
        u0, u1, u2, u3, u4 = V(231), V(232), V(233), V(234), V(235)
        if mha: g.salu(f"s_mul_i32 {sT0}, {sP_}, 8704")
        else: g.salu(f"s_mov_b32 {sT0}, 0")
        g.valu('v_lshrrev_b32', t0, 2, u0)
        g.valu('v_mul_u32_u24', t0, 1088, t0)
        g.valu('v_lshl_add_u32', t0, u3, 8, t0)
        g.valu('v_add_u32', t0, sT0, t0)
        for v in range(2):
            g.valu('v_or_b32', t1, 2 * v, u1)
            g.valu('v_xor_b32', t1, t1, u3)
            g.valu('v_lshl_add_u32', aK[v], t1, 4, t0)
        g.salu(f"s_mul_i32 {sT1}, {sJ}, {4*1088}"); g.salu(f"s_add_u32 {sT1}, {sT1}, {sT0}")
        g.valu('v_mul_u32_u24', t0, 1088, u2)
        g.valu('v_lshl_add_u32', t0, u3, 8, t0)
        g.valu('v_xor_b32', t1, u4, u3)
        g.valu('v_lshl_add_u32', t0, t1, 4, t0)
        g.valu('v_add_u32', aKX, sT1, t0)
        if mha: g.salu(f"s_lshl_b32 {sT0}, {sP_}, 13"); g.salu(f"s_add_u32 {sT0}, {sT0}, {VBASE}")
        else: g.salu(f"s_mov_b32 {sT0}, {VBASE}")
        g.valu('v_lshrrev_b32', t3, 1, u2)
        g.valu('v_lshl_add_u32', t0, u1, 2, u2)
        g.valu('v_lshlrev_b32', t0, 7, t0)
        g.valu('v_and_b32', t1, 1, u4)
        g.valu('v_lshl_add_u32', t0, t1, 5, t0)
        g.valu('v_lshl_add_u32', t0, u3, 3, t0)
        g.valu('v_add_u32', t0, sT0, t0)
        for b in range(2):
            g.valu('v_xor_b32', t2, b, t3)
            g.valu('v_lshl_add_u32', aV[b], t2, 6, t0)
        g.salu(f"s_lshl_b32 {sT1}, {sJ}, 12"); g.salu(f"s_add_u32 {sT1}, {sT1}, {sT0}")
        g.valu('v_lshl_add_u32', t0, t1, 2, u2)
        g.valu('v_lshlrev_b32', t0, 7, t0)
        g.valu('v_lshrrev_b32', t2, 1, u4)
        g.valu('v_lshl_add_u32', t0, t2, 11, t0)
        g.valu('v_lshl_add_u32', t0, u3, 4, t0)
        g.valu('v_add_u32', t0, sT1, t0)
        for b in range(2):
            g.valu('v_xor_b32', t2, b, t3)
            g.valu('v_lshl_add_u32', aVX[b], t2, 6, t0)
        g.valu('v_xor_b32', t0, 32, l); g.valu('v_lshlrev_b32', vBP32, 2, t0)
        g.valu('v_xor_b32', t0, 16, l); g.valu('v_lshlrev_b32', vBP16, 2, t0)
        for qb in range(2):
            for r in range(16): g.valu('v_mov_b32', NM(qb)[r], 0)
        for r in range(4): g.valu('v_mov_b32', NMX[r], 0)
        for x in LL: g.valu('v_mov_b32', x, 0)

    def rdK(self, t, ds): self.g.ds_read('ds_read_b128', KF(ds), aK[ds & 1], KBASE + KSLOT * (t & 3) + (ds >> 1) * 64)
    def rdKX(self, t, d): self.g.ds_read('ds_read_b128', KXF(d), aKX, KBASE + KSLOT * (t & 3) + d * 64)
    def rdV(self, t, i):
        ks, db = i >> 2, i & 3
        half, b = db >> 1, db & 1
        for u in range(2):
            self.g.ds_read('ds_read_b64_tr_b16', VF(i).sub(2 * u, 2), aV[b], VSLOT * (t & 3) + (2 * ks + u) * 2048 + half * 1024)
    def rdVX(self, t, e):
        ds, e0 = e >> 1, e & 1
        half, b = ds >> 1, ds & 1
        self.g.ds_read('ds_read_b64_tr_b16', VXF(e), aVX[b], VSLOT * (t & 3) + half * 1024 + e0 * 8)
    def qk_slots(self, t):
        g = self.g; par = t & 1
        slots = []; idx = {}
        for ds in range(8):
            for qb in range(2):
                Cop = NM(qb) if ds == 0 else SS(par, qb)
                idx[('Q', 2 * ds + qb)] = len(slots)
                slots.append((lambda ds=ds, qb=qb, Cop=Cop: g.mfma('32x32x16', SS(par, qb), KF(ds), QF(qb, ds), Cop), 24))
            if ds & 1:
                d = ds >> 1
                Cx = NMX if d == 0 else SX(par)
                idx[('QX', d)] = len(slots)
                slots.append((lambda d=d, Cx=Cx: g.mfma('16x16x32', SX(par), KXF(d), QXF(d), Cx), 8))
        return slots, idx
    def pv_slots(self, t):
        g = self.g; par = t & 1
        slots = []; idx = {}
        for i in range(8):
            ks, db = i >> 2, i & 3
            for qb in range(2):
                idx[('B', 2 * i + qb)] = len(slots)
                slots.append((lambda i=i, ks=ks, db=db, qb=qb: g.mfma('32x32x16', OA(qb, db), VF(i), PP(par, qb, ks), OA(qb, db)), 24))
            idx[('PX', i)] = len(slots)
            slots.append((lambda e=i: g.mfma('16x16x16', OXA(e), VXF(e), PX(par), OXA(e)), 8))
        return slots, idx
    def softmax_stream(self, par):
        g = self.g
        groups = []
        for ks in range(2):
            for qb in range(2):
                for k in range(4):
                    r = 8 * ks + 2 * k
                    groups.append((SS(par, qb)[r], SS(par, qb)[r + 1], PP(par, qb, ks)[k], SUM[qb], ks == 0 and k == 0))
            if ks == 0:
                for k in range(2):
                    groups.append((SX(par)[2 * k], SX(par)[2 * k + 1], PX(par)[k], SUM[2], k == 0))
        st = []
        def fin(n):
            a, b, p, s, first = groups[n]
            ta, tb = TMP(2 * n), TMP(2 * n + 1)
            if first:
                st.append((lambda: g.valu('v_add_f32', s, ta, tb), C_VALU))
            else:
                st.append((lambda: g.valu('v_add_f32', s, s, ta), C_VALU))
                st.append((lambda: g.valu('v_add_f32', s, s, tb), C_VALU))
            st.append((lambda: g.valu('v_cvt_pk_bf16_f32', p, ta, tb), C_VOP3))
        for n, (a, b, p, s, first) in enumerate(groups):
            st.append((lambda a=a, n=n: g.valu('v_exp_f32', TMP(2 * n), a), C_TRANS))
            st.append((lambda b=b, n=n: g.valu('v_exp_f32', TMP(2 * n + 1), b), C_TRANS))
            if n >= 1: fin(n - 1)
        fin(len(groups) - 1)
        return st
    def check(self, par):
        g = self.g
        stub = g.newlabel(f"L{self.tag}_stub"); ret = g.newlabel(f"L{self.tag}_ret")
        self.rets.append((stub, ret, par))
        g.valu('v_max3_f32', vMX, SUM[0], SUM[1], SUM[2])
        g.raw(f"v_cmp_lt_f32 vcc, {sTHR}, {vMX}", 'valu', [sTHR, vMX], [('vcc', 0)], meta='v_cmp')
        g.branch(f"s_cbranch_vccnz {stub}")
        g.label(ret)
        for i in range(3): g.valu('v_add_f32', LL[i], LL[i], SUM[i])

    def body(self, t, in_loop, dmas, do_qk=True, do_sm=True, vwait=None, next_v=True, bar=True):
        g = self.g
        xs, xi = self.pv_slots(t)
        if do_qk: ys, yi = self.qk_slots(t + 2)
        else: ys, yi = [], {}
        nx = len(xs)
        slots = xs + ys
        fixed = {}
        def add(s, fn, cost): fixed.setdefault(s, []).append((fn, cost))
        B = lambda i: xi[('B', i)]; PXs = lambda e: xi[('PX', e)]
        Q = lambda i: nx + yi[('Q', i)]
        for i in range(4, 8):
            add(B(2 * (i - 4) + 1), lambda i=i: self.rdV(t, i), 2 * C_DS)
            add(B(2 * (i - 4) + 2), lambda i=i: self.rdVX(t, i), C_DS)
        if bar:
            def barf():
                if vwait: vwait()
                g.barrier()
            add(B(8), barf, 8)
        if do_qk:
            for ds in range(4):
                add(B(9 + 2 * ds), lambda ds=ds: self.rdK(t + 2, ds), C_DS)
                add(B(10 + 2 * ds) if ds < 3 else B(15), lambda ds=ds: self.rdKX(t + 2, ds), C_DS)
            for ds in range(4, 8):
                add(Q(2 * (ds - 4) + 1), lambda ds=ds: self.rdK(t + 2, ds), C_DS)
            if next_v:
                for i in range(4):
                    add(Q(8 + 2 * i + 1), lambda i=i: self.rdV(t + 1, i), 2 * C_DS)
                    add(Q(8 + 2 * i), lambda i=i: self.rdVX(t + 1, i), C_DS)
            dpos = [Q(0), Q(2), Q(4), Q(6), Q(8), Q(10), Q(12), Q(14)]
            endslot = Q(13)
        else:
            if next_v:
                for i in range(4):
                    add(B(2 * (4 + i) + 1), lambda i=i: self.rdV(t + 1, i), 2 * C_DS)
                    add(PXs(4 + i), lambda i=i: self.rdVX(t + 1, i), C_DS)
            dpos = [B(9), B(10), B(11), B(12), B(13), B(14), B(15)]
            endslot = len(slots) - 1
        k = 0
        for fn, cost in dmas:
            add(dpos[min(k, len(dpos) - 1)], fn, cost)
            if cost >= C_DMA: k += 1
        par = (t + 1) & 1
        if do_sm:
            stream = self.softmax_stream(par)
            if do_qk: stream.append((lambda: self.check(par), 6 * C_VALU))
            interleave(slots, fixed, stream, 2, endslot)
            if not do_qk: self.check(par)
        else:
            interleave(slots, fixed, [], 0, len(slots) - 1)

    def attention(self):
        g = self.g
        self.attn_addr()
        g.wait_vm(('K', 0), ('K', 1), ('V', 0)); g.barrier()
        for t in range(2):
            ys, yi = self.qk_slots(t)
            fixed = {}
            def add(s, fn, cost): fixed.setdefault(s, []).append((fn, cost))
            Q = lambda i: yi[('Q', i)]
            if t == 0:
                for ds in range(4): self.rdK(0, ds)
                for d in range(4): self.rdKX(0, d)
            for ds in range(4, 8):
                add(Q(2 * (ds - 4) + 1), lambda ds=ds: self.rdK(t, ds), C_DS)
            if t == 0:
                for ds in range(4):
                    add(Q(8 + 2 * ds + 1), lambda ds=ds: self.rdK(1, ds), C_DS)
                for d in range(4):
                    add(yi[('QX', d)], lambda d=d: self.rdKX(1, d), C_DS)
            else:
                for i in range(4):
                    add(Q(8 + 2 * i + 1), lambda i=i: self.rdV(0, i), 2 * C_DS)
                    add(Q(8 + 2 * i), lambda i=i: self.rdVX(0, i), C_DS)
            interleave(ys, fixed, [], 0, len(ys) - 1)
        g.barrier()
        self.run(self.kv_pre('K', 4))
        stub = g.newlabel(f"L{self.tag}_stub"); ret = g.newlabel(f"L{self.tag}_ret")
        self.rets.append((stub, ret, 0))
        g.salu(f"s_mov_b32 {sFIRST}, 1")
        g.branch(f"s_branch {stub}")
        g.label(ret)
        g.salu(f"s_mov_b32 {sFIRST}, 0")
        for i in range(3): g.valu('v_add_f32', LL[i], LL[i], SUM[i])
        g.wait_lgkm0()
        self.stamp(3)
        g.salu(f"s_mov_b32 {sKOFF}, {5*8192}")
        g.salu(f"s_mov_b32 {sLOOP}, 7")
        N = 2 * self.nk
        def loop_bodies(t0):
            for t in range(t0, t0 + 4):
                dm = self.k_dma((t + 1) & 3, ('K', t + 5), sKOFF) + self.v_dma((t + 3) & 3, ('V', t + 3), sKOFF)
                if self.o.get('nodma'): dm = []
                dm.append((lambda: g.salu(f"s_add_u32 {sKOFF}, {sKOFF}, {0 if self.o.get('fakekv') else 8192}"), C_SALU))
                self.body(t, True, dm, vwait=lambda: g.wait_vm_n(N))
        lab = f"L{self.tag}_loop"
        g.label(lab)
        start = len(g.ins)
        pend0 = list(g.lds_pending)
        nrets = len(self.rets); nl = g.nlabel
        loop_bodies(0)
        txt1 = [i.text for i in g.ins[start:]]
        end1 = len(g.ins)
        self.loop_range = (start, end1)
        save_ins = g.ins[:]; save_rets = self.rets[:]; save_nl = g.nlabel; save_vm = (g.vm_log[:], g.vm_done)
        g.nlabel = nl
        loop_bodies(0)
        txt2 = [i.text for i in g.ins[end1:]]
        pend_end = [(d, i - end1) for d, i in g.lds_pending]
        if txt1 != txt2:
            second = g.ins[end1:]
            g.ins = save_ins[:start] + second
            g.lds_pending = [(d, i + start) for d, i in pend_end]
            self.rets = save_rets
            self.loop_range = (start, len(g.ins))
        else:
            g.ins = save_ins
            g.lds_pending = [(d, i + start) for d, i in pend_end]
            self.rets = save_rets
        g.nlabel = save_nl
        g.vm_log, g.vm_done = save_vm
        g.salu(f"s_sub_u32 {sLOOP}, {sLOOP}, 1")
        g.salu(f"s_cmp_lg_u32 {sLOOP}, 0")
        g.branch(f"s_cbranch_scc1 {lab}")
        fix = []
        if self.o.get('nodma'):
            for t in range(4): g.vm_log += [('K', t + 5)] * self.nk + [('V', t + 3)] * self.nk
        for tok in g.vm_log[-4 * N:]:
            fix.append((tok[0], tok[1] + 24))
        g.vm_log = g.vm_log[:-4 * N] + fix
        g.vm_done = len(g.vm_log) - N - (N if False else 0)
        g.vm_done = len(g.vm_log) - 2 * N
        self.stamp(4)
        self.wo_next = 0
        self.body(28, False, self.v_dma(31 & 3, ('V', 31), sKOFF) + self.wo_dma(0) + self.wo_dma(1),
                  vwait=lambda: g.wait_vm(('K', 30), ('V', 29), ('K', 32)))
        self.body(29, False, self.wo_dma(2) + self.wo_dma(3), vwait=lambda: g.wait_vm(('K', 31), ('V', 30)))
        self.body(30, False, self.wo_dma(4), do_qk=False, vwait=lambda: g.wait_vm(('V', 31)))
        self.body(31, False, [], do_qk=False, do_sm=False, next_v=False, bar=False)

    def wo_dma(self, n):
        g = self.g
        ps, kc = n // 8, n % 8
        fns = []
        if n == 0:
            fns.append((self.wo_voff, 10 * C_VALU))
        fns.append((lambda: g.salu(f"s_mov_b32 {sT2}, {kc*32*1152 + ps*384}"), C_SALU))
        fns.append((lambda: g.raw(f"s_add_u32 m0, {sMO}, {WSL[n % 6]}", 'salu', [sMO], [('m0', 0)]), C_SALU))
        for seg in range(3):
            fns.append((lambda seg=seg: g.dma(self.dO[seg], srdWO, sT2, seg * 1024, ('W', n), self.wflags), C_DMA))
        return fns
    def wo_voff(self):
        g = self.g; l = vLANE; t0, t1, t2, t3 = vT
        self.dO = [V(221), V(222), V(223)]
        g.valu('v_bfe_u32', t0, l, 4, 1)
        g.valu('v_lshlrev_b32', t0, 2, t0)
        g.valu('v_and_b32', t1, 7, l)
        g.valu('v_xor_b32', t0, t0, t1)
        g.valu('v_lshlrev_b32', t0, 4, t0)
        g.valu('v_lshrrev_b32', t1, 3, l)
        g.valu('v_mul_u32_u24', t1, 1152, t1)
        g.valu('v_add_u32', t0, t0, t1)
        g.salu(f"s_mul_i32 {sT0}, {sW}, 9216")
        g.valu('v_add_u32', t0, sT0, t0)
        for seg in range(3):
            g.valu('v_add_u32', self.dO[seg], 2048 + seg * (128 - 1024), t0)

    def handlers(self):
        g = self.g
        for par in range(2):
            hl = f"L{self.tag}_H{par}"
            g2 = g
            g.lds_pending = []
            g.label(hl)
            g.nop(32)
            g.wait_lgkm0()
            d, f, tt, tu = vH
            blocks = [(SS(par, 0), SS(1 - par, 0), NM(0), [PP(par, 0, 0), PP(par, 0, 1)], SUM[0], LL[0], [OA(0, db) for db in range(4)], [vBP32]),
                      (SS(par, 1), SS(1 - par, 1), NM(1), [PP(par, 1, 0), PP(par, 1, 1)], SUM[1], LL[1], [OA(1, db) for db in range(4)], [vBP32]),
                      (SX(par), SX(1 - par), NMX, [PX(par)], SUM[2], LL[2], [OXA(e) for e in range(8)], [vBP16, vBP32])]
            for cur, nxt, nm, ps, s, ll, oa, hops in blocks:
                n = cur.n
                g.valu('v_max_f32', d, cur[0], cur[1])
                for r in range(2, n, 2): g.valu('v_max3_f32', d, d, cur[r], cur[r + 1])
                for hp in hops:
                    g.bpermute(tt, hp, d)
                    g.valu('v_max_f32', d, d, tt)
                skip = g.newlabel(f"L{self.tag}_hs")
                g.salu(f"s_cmp_eq_u32 {sFIRST}, 1")
                g.branch(f"s_cbranch_scc1 {skip}")
                g.valu('v_max_f32', d, 0, d)
                g.valu('v_sub_f32', f, 0, d)
                g.valu('v_exp_f32', f, f)
                g.nop(1)
                g.valu('v_mul_f32', ll, ll, f)
                for o in oa:
                    for r in range(o.n):
                        x = TMP(r)
                        g.valu('v_accvgpr_read_b32', x, o[r])
                        g.valu('v_mul_f32', x, x, f)
                        g.valu('v_accvgpr_write_b32', o[r], x)
                g.label(skip)
                for r in range(n):
                    g.valu('v_sub_f32', nm[r], nm[r], d)
                    g.valu('v_sub_f32', nxt[r], nxt[r], d)
                    g.valu('v_sub_f32', cur[r], cur[r], d)
                pregs = []
                for p in ps: pregs += [p[k] for k in range(p.n)]
                for k in range(n // 2):
                    g.valu('v_exp_f32', tt, cur[2 * k]); g.valu('v_exp_f32', tu, cur[2 * k + 1])
                    g.nop(1)
                    if k == 0: g.valu('v_add_f32', s, tt, tu)
                    else:
                        g.valu('v_add_f32', s, s, tt); g.valu('v_add_f32', s, s, tu)
                    g.valu('v_cvt_pk_bf16_f32', pregs[k], tt, tu)
            g.nop(4)
            mine = [(i, r) for i, (st, r, p) in enumerate(self.rets) if p == par]
            for i, r in mine[:-1]:
                g.salu(f"s_cmp_eq_u32 {sRET}, {i}")
                g.branch(f"s_cbranch_scc1 {r}")
            g.branch(f"s_branch {mine[-1][1]}")
        for i, (st, r, p) in enumerate(self.rets):
            g.label(st)
            g.salu(f"s_mov_b32 {sRET}, {i}")
            g.branch(f"s_branch L{self.tag}_H{p}")

    def oproj(self):
        g = self.g
        l = vLANE; t0, t1, t2, t3 = vT
        u0, u1, u2, u3, u4 = V(231), V(232), V(233), V(234), V(235)
        inv = [V(224), V(225)]
        for qb in range(2):
            g.bpermute(t0, vBP32, LL[qb])
            g.valu('v_add_f32', LL[qb], LL[qb], t0)
            g.valu('v_rcp_f32', inv[qb], LL[qb])
        g.bpermute(t0, vBP16, LL[2]); g.valu('v_add_f32', LL[2], LL[2], t0)
        g.bpermute(t0, vBP32, LL[2]); g.valu('v_add_f32', LL[2], LL[2], t0)
        aL16 = V(226)
        g.valu('v_lshlrev_b32', aL16, 4, l)
        aEXw = V(227)
        g.salu(f"s_lshl_b32 {sT0}, {sW}, 14"); g.salu(f"s_add_u32 {sT0}, {sT0}, {EX}")
        g.valu('v_add_u32', aEXw, sT0, aL16)
        aMSw = V(228); aMSr = V(229); aMLw = V(230); aMLr = V(236)
        g.salu(f"s_lshl_b32 {sT0}, {sW}, 12"); g.salu(f"s_add_u32 {sT0}, {sT0}, {MS}")
        g.valu('v_add_u32', aMSw, sT0, aL16)
        g.salu(f"s_xor_b32 {sT1}, {sW}, 1"); g.salu(f"s_lshl_b32 {sT0}, {sT1}, 12"); g.salu(f"s_add_u32 {sT0}, {sT0}, {MS}")
        g.valu('v_add_u32', aMSr, sT0, aL16)
        g.valu('v_lshlrev_b32', t0, 3, l)
        g.salu(f"s_lshl_b32 {sT0}, {sW}, 9"); g.salu(f"s_add_u32 {sT0}, {sT0}, {MS + 16384}")
        g.valu('v_add_u32', aMLw, sT0, t0)
        g.salu(f"s_lshl_b32 {sT0}, {sT1}, 9"); g.salu(f"s_add_u32 {sT0}, {sT0}, {MS + 16384}")
        g.valu('v_add_u32', aMLr, sT0, t0)
        g.wait_lgkm0(); g.barrier()
        OX = V(128, 32)
        nmx0 = V(183)
        g.valu('v_mov_b32', nmx0, NMX[0])
        for e in range(8):
            for r in range(4): g.valu('v_accvgpr_read_b32', OX[4 * e + r], OXA(e)[r])
        if self.o.get('dump') == 'o':
            for k in range(8):
                g.salu(f"s_lshl_b32 {sT3}, {sW}, 13"); g.salu(f"s_add_u32 {sT3}, {sT3}, {98304 + k * 1024}")
                g.vstore('buffer_store_dwordx4', OX.sub(4 * k, 4), aL16, srdD, sT3, 0, 'dump')
        lj1 = g.newlabel(f"L{self.tag}_j1"); ljd = g.newlabel(f"L{self.tag}_jd")
        own = V(160, 16)
        g.salu(f"s_cmp_eq_u32 {sJ}, 1")
        g.branch(f"s_cbranch_scc1 {lj1}")
        for k in range(4): g.ds_write('ds_write_b128', aMSw, OX.sub(16 + 4 * k, 4), k * 1024)
        for k in range(16): g.valu('v_mov_b32', own[k], OX[k])
        g.branch(f"s_branch {ljd}")
        g.label(lj1)
        for k in range(4): g.ds_write('ds_write_b128', aMSw, OX.sub(4 * k, 4), k * 1024)
        for k in range(16): g.valu('v_mov_b32', own[k], OX[16 + k])
        g.label(ljd)
        ml = V(176, 2)
        g.valu('v_mov_b32', ml[0], nmx0); g.valu('v_mov_b32', ml[1], LL[2])
        g.ds_write('ds_write_b64', aMLw, ml, 0)
        if self.o.get('dump') == 'o':
            g.valu('v_lshlrev_b32', t0, 3, l)
            g.salu(f"s_lshl_b32 {sT3}, {sW}, 9"); g.salu(f"s_add_u32 {sT3}, {sT3}, {81920}")
            g.vstore('buffer_store_dwordx2', ml, t0, srdD, sT3, 0, 'dump')
        for qb in range(2):
            for db in range(4):
                tmp = V(16 * ((qb * 4 + db) & 3), 16)
                for r in range(16): g.valu('v_accvgpr_read_b32', tmp[r], OA(qb, db)[r])
                for r in range(16): g.valu('v_mul_f32', tmp[r], tmp[r], inv[qb])
                pk = V(64 + 8 * ((qb * 4 + db) & 3), 8)
                for k in range(8): g.valu('v_cvt_pk_bf16_f32', pk[k], tmp[2 * k], tmp[2 * k + 1])
                for sp in range(2):
                    g.ds_write('ds_write_b128', aEXw, pk.sub(4 * sp, 4), qb * 8192 + (2 * db + sp) * 1024)
                if self.o.get('dump') == 'o':
                    for sp in range(2):
                        g.salu(f"s_mov_b32 {sT3}, {qb * 8192 + (2 * db + sp) * 1024}")
                        g.salu(f"s_lshl_b32 {sT0}, {sW}, 14"); g.salu(f"s_add_u32 {sT3}, {sT3}, {sT0}")
                        g.vstore('buffer_store_dwordx4', pk.sub(4 * sp, 4), aL16, srdD, sT3, 0, 'dump')
        g.wait_lgkm0(); g.barrier()
        oth = V(128, 16); pml = V(178, 2)
        g.ds_read('ds_read_b64', pml, aMLr, 0)
        for k in range(4): g.ds_read('ds_read_b128', oth.sub(4 * k, 4), aMSr, k * 1024)
        nM, fa, fb = V(180), V(181), V(182)
        g.valu('v_min_f32', nM, nmx0, pml[0])
        g.valu('v_sub_f32', fa, nM, nmx0); g.valu('v_sub_f32', fb, nM, pml[0])
        g.valu('v_exp_f32', fa, fa); g.valu('v_exp_f32', fb, fb)
        g.nop(1)
        g.valu('v_mul_f32', t0, fa, LL[2])
        g.valu('v_fmac_f32', t0, fb, pml[1])
        g.valu('v_rcp_f32', t0, t0)
        g.nop(1)
        g.valu('v_mul_f32', fa, fa, t0); g.valu('v_mul_f32', fb, fb, t0)
        for k in range(16):
            g.valu('v_mul_f32', own[k], own[k], fa)
            g.valu('v_fmac_f32', own[k], oth[k], fb)
        pkx = V(184, 8)
        for k in range(8): g.valu('v_cvt_pk_bf16_f32', pkx[k], own[2 * k], own[2 * k + 1])
        aXw = V(237)
        g.salu(f"s_lshl_b32 {sT0}, {sW}, 11"); g.salu(f"s_add_u32 {sT0}, {sT0}, {EXX}")
        g.valu('v_add_u32', aXw, sT0, aL16)
        for s in range(2): g.ds_write('ds_write_b128', aXw, pkx.sub(4 * s, 4), s * 1024)
        if self.o.get('dump') == 'o':
            for s in range(2):
                g.salu(f"s_lshl_b32 {sT3}, {sW}, 11"); g.salu(f"s_add_u32 {sT3}, {sT3}, {65536 + s * 1024}")
                g.vstore('buffer_store_dwordx4', pkx.sub(4 * s, 4), aL16, srdD, sT3, 0, 'dump')
        aO = [V(238), V(239), V(240)]; aOX = [V(241), V(242), V(243)]; aB = V(244); aBX = V(245)
        vPo = V(246); vPx = V(247)
        w0 = WSL[0]
        g.valu('v_lshrrev_b32', t3, 1, u2)
        g.valu('v_lshl_add_u32', t0, u1, 2, u2); g.valu('v_lshlrev_b32', t0, 7, t0)
        g.valu('v_and_b32', t1, 1, u4); g.valu('v_lshl_add_u32', t0, t1, 5, t0)
        g.valu('v_and_b32', t1, 1, u3); g.valu('v_lshl_add_u32', t0, t1, 4, t0)
        g.valu('v_lshrrev_b32', t1, 1, u3); g.valu('v_lshl_add_u32', t0, t1, 3, t0)
        for i in range(3):
            g.salu(f"s_mul_i32 {sT0}, {sP_}, 3"); g.salu(f"s_add_u32 {sT0}, {sT0}, {i}")
            g.salu(f"s_and_b32 {sT1}, {sT0}, 1"); g.salu(f"s_lshr_b32 {sT0}, {sT0}, 1"); g.salu(f"s_lshl_b32 {sT0}, {sT0}, 10")
            g.salu(f"s_add_u32 {sT0}, {sT0}, {w0}")
            g.valu('v_xor_b32', t1, sT1, t3)
            g.valu('v_lshl_add_u32', t1, t1, 6, t0)
            g.valu('v_add_u32', aO[i], sT0, t1)
        g.valu('v_mul_u32_u24', t0, 3072, u4)
        g.valu('v_lshl_add_u32', t0, u2, 7, t0)
        g.valu('v_lshl_add_u32', t0, u3, 3, t0)
        for i in range(3):
            g.salu(f"s_mul_i32 {sT0}, {sW}, 3"); g.salu(f"s_add_u32 {sT0}, {sT0}, {i}")
            g.salu(f"s_bfe_u32 {sT1}, {sT0}, 0x10001")
            g.salu(f"s_and_b32 {sT2}, {sT0}, 1"); g.salu(f"s_lshl_b32 {sT2}, {sT2}, 5")
            g.salu(f"s_lshr_b32 {sT0}, {sT0}, 2"); g.salu(f"s_lshl_b32 {sT0}, {sT0}, 10")
            g.salu(f"s_add_u32 {sT0}, {sT0}, {sT2}"); g.salu(f"s_add_u32 {sT0}, {sT0}, {w0}")
            g.valu('v_xor_b32', t1, sT1, t3)
            g.valu('v_lshl_add_u32', t1, t1, 6, t0)
            g.valu('v_add_u32', aOX[i], sT0, t1)
        g.salu(f"s_lshl_b32 {sT0}, {sJ}, 14"); g.salu(f"s_add_u32 {sT0}, {sT0}, {EX}")
        g.valu('v_add_u32', aB, sT0, aL16)
        g.valu('v_add_u32', aBX, EXX, aL16)
        g.salu(f"s_mul_i32 {sT0}, {sJ}, {2*18*2048}"); g.salu(f"s_mul_i32 {sT1}, {sP_}, {3*2048}"); g.salu(f"s_add_u32 {sT0}, {sT0}, {sT1}")
        g.valu('v_add_u32', vPo, sT0, aL16)
        g.salu(f"s_mul_i32 {sT0}, {sW}, {3*512}"); g.salu(f"s_add_u32 {sT0}, {sT0}, 147456")
        g.valu('v_lshlrev_b32', t0, 3, l)
        g.valu('v_add_u32', vPx, sT0, t0)
        def AC(ps, i, qb): return (V if True else A)(0, 1) and (V(96 * (ps & 1) + 32 * i + 16 * qb, 16) if (ps & 1) == 0 else A(32 * i + 16 * qb, 16))
        def ACX(ps, i): return V(96 + 4 * i, 4) if (ps & 1) == 0 else A(96 + 4 * i, 4)
        def OF(i): return V(112 + 4 * (i % 6), 4)
        def BF(i): return V(136 + 4 * (i & 3), 4)
        def OXF(i): return V(152 + 4 * (i % 3), 4)
        def BXF(n): return V(164 + 4 * (n & 1), 4)
        STG = V(172, 48)
        pflags = self.o.get('pflags', '')
        def rdO(n, k):
            s, i = k // 3, k % 3
            for u in range(2):
                g.ds_read('ds_read_b64_tr_b16', OF(6 * n + k).sub(2 * u, 2), aO[i], (2 * s + u) * 3072)
        def rdB(n, k):
            kc = n % 8; ph, kk = kc >> 2, kc & 3
            s, qb = k >> 1, k & 1
            g.ds_read('ds_read_b128', BF(k), aB, ph * 32768 + qb * 8192 + (2 * kk + s) * 1024)
        def rdOX(n, i):
            for u in range(2):
                g.ds_read('ds_read_b64_tr_b16', OXF(i).sub(2 * u, 2), aOX[i], u * 512)
        def rdBX(n):
            kc = n % 8
            g.ds_read('ds_read_b128', BXF(n), aBX, (kc >> 2) * 4096 + (kc & 3) * 1024)
        def bump(reg, n):
            d = WSL[(n + 1) % 6] - WSL[n % 6]
            g.valu('v_add_u32', reg, d & 0xffffffff, reg)
        def out_stream(ps):
            st = []
            inA = (ps & 1) == 1
            cnt = 0
            for i in range(3):
                for qb in range(2):
                    acc = AC(ps, i, qb)
                    tb = STG.sub(24 * (cnt & 1), 24); cnt += 1
                    src = acc
                    if inA:
                        for r in range(16): st.append((lambda r=r, tb=tb, acc=acc: g.valu('v_accvgpr_read_b32', tb[r], acc[r]), C_VOP3))
                        src = tb.sub(0, 16)
                    pk = tb.sub(16, 8)
                    for k in range(8): st.append((lambda k=k, pk=pk, src=src: g.valu('v_cvt_pk_bf16_f32', pk[k], src[2 * k], src[2 * k + 1]), C_VOP3))
                    def sto(pk=pk, i=i, qb=qb):
                        g.salu(f"s_mov_b32 {sT3}, {qb * 36864 + (6 * ps + i) * 2048}")
                        for s in range(2): g.vstore('buffer_store_dwordx4', pk.sub(4 * s, 4), vPo, srdP, sT3, s * 1024, 'st', pflags)
                    st.append((sto, 2 * C_DMA))
            tb = STG.sub(24 * (cnt & 1), 24)
            for i in range(3):
                acc = ACX(ps, i); src = acc
                if inA:
                    for r in range(4): st.append((lambda r=r, i=i, acc=acc: g.valu('v_accvgpr_read_b32', tb[4 * i + r], acc[r]), C_VOP3))
                    src = tb.sub(4 * i, 4)
                pk = tb.sub(16 + 2 * i, 2)
                for k in range(2): st.append((lambda k=k, pk=pk, src=src: g.valu('v_cvt_pk_bf16_f32', pk[k], src[2 * k], src[2 * k + 1]), C_VOP3))
            def stx():
                g.salu(f"s_mov_b32 {sT3}, {12 * ps * 512}")
                for i in range(3): g.vstore('buffer_store_dwordx2', tb.sub(16 + 2 * i, 2), vPx, srdP, sT3, i * 512, 'st', pflags)
            st.append((stx, 3 * C_DMA))
            return st
        g.wait_lgkm0(); g.wait_vm(('W', 0)); g.barrier()
        self.run(self.wo_dma(5))
        def head_reads(n):
            return [lambda: rdB(n, 0), lambda: rdB(n, 1), lambda: rdO(n, 0), lambda: rdO(n, 1), lambda: rdO(n, 2), lambda: rdBX(n)]
        for f in head_reads(0): f()
        NW = 24
        pending_out = []
        for n in range(NW):
            ps, kc = n // 8, n % 8
            slots = []; fixed = {}; idx = {}
            def add(s, fn, cost): fixed.setdefault(s, []).append((fn, cost))
            for s in range(2):
                for i in range(3):
                    for qb in range(2):
                        Cop = 0 if (kc == 0 and s == 0) else AC(ps, i, qb)
                        idx[('B', 6 * s + 2 * i + qb)] = len(slots)
                        slots.append((lambda s=s, i=i, qb=qb, Cop=Cop: g.mfma('32x32x16', AC(ps, i, qb), OF(6 * n + 3 * s + i), BF(2 * s + qb), Cop), 24))
                    if s == 1:
                        Cx = 0 if kc == 0 else ACX(ps, i)
                        idx[('X', i)] = len(slots)
                        slots.append((lambda i=i, Cx=Cx: g.mfma('16x16x32', ACX(ps, i), OXF(i), BXF(n), Cx), 8))
            B = lambda i: idx[('B', i)]
            add(B(0), lambda: rdB(n, 2), C_DS); add(B(0), lambda: rdB(n, 3), C_DS)
            add(B(1), lambda: rdO(n, 3), 2 * C_DS); add(B(2), lambda: rdO(n, 4), 2 * C_DS); add(B(3), lambda: rdO(n, 5), 2 * C_DS)
            add(B(4), lambda: rdOX(n, 0), 2 * C_DS); add(B(4), lambda: rdOX(n, 1), 2 * C_DS); add(B(5), lambda: rdOX(n, 2), 2 * C_DS)
            last = n == NW - 1
            if not last:
                def bar(n=n):
                    g.wait_vm(('W', n + 1)); g.barrier()
                add(B(6), bar, 8)
                add(B(6), lambda: [bump(r, n) for r in aO + aOX], 6 * C_VOP3)
                hr = head_reads(n + 1)
                add(B(7), hr[0], C_DS); add(B(7), hr[1], C_DS)
                add(B(8), hr[2], 2 * C_DS); add(B(9), hr[3], 2 * C_DS); add(B(10), hr[4], 2 * C_DS); add(B(11), hr[5], C_DS)
                if n >= 1 and n + 5 < NW:
                    k = 0
                    for fn, cost in self.wo_dma(n + 5):
                        add(B(8 + min(k, 3)), fn, cost)
                        if cost >= C_DMA: k += 1
            st = []
            if pending_out and kc < 6:
                m = (len(pending_out) + (5 - kc)) // (6 - kc)
                st, pending_out = pending_out[:m], pending_out[m:]
            s0 = 3 if kc == 0 else 0
            interleave(slots, fixed, st, s0, len(slots) - 1)
            if kc == 7: pending_out = out_stream(ps)
        for f, _ in pending_out: f()

    def gen(self):
        g = self.g
        g.label(f"L{self.tag}_start")
        if self.o.get('only') and self.o.get('only') != self.tag:
            g.raw("s_endpgm", 'branch')
            return
        self.stamp(0)
        self.setup()
        self.qproj()
        self.stamp(2)
        if self.o.get('dump') == 'q':
            aL16 = V(226)
            g.valu('v_lshlrev_b32', aL16, 4, vLANE)
            for n in range(20):
                for k in range(4): g.valu('v_accvgpr_read_b32', V(k), A(160 + 4 * n + k))
                g.salu(f"s_mul_i32 {sT3}, {sW}, {20*1024}"); g.salu(f"s_add_u32 {sT3}, {sT3}, {n*1024}")
                g.vstore('buffer_store_dwordx4', V(0, 4), aL16, srdD, sT3, 0, 'dump')
                g.nop(2)
            g.wait_vm_n(0)
            g.raw("s_endpgm", 'branch')
            return
        self.attention()
        self.stamp(5)
        self.oproj()
        self.stamp(6)
        self.stamp_out()
        g.raw("s_endpgm", 'branch')
        self.handlers()

def kd(name, vgpr, accum, sgpr=102):
    return f""".amdhsa_kernel {name}
  .amdhsa_next_free_vgpr {vgpr}
  .amdhsa_next_free_sgpr {sgpr}
  .amdhsa_accum_offset {accum}
  .amdhsa_group_segment_fixed_size 0
  .amdhsa_kernarg_size 104
  .amdhsa_user_sgpr_count 2
  .amdhsa_user_sgpr_kernarg_segment_ptr 1
  .amdhsa_system_sgpr_workgroup_id_x 1
.end_amdhsa_kernel
"""

def gen_k1(opts):
    head = Gen()
    g = head
    g.salu("s_cmp_ge_u32 s2, 256")
    g.branch("s_cbranch_scc1 L_exit")
    g.salu("s_load_dwordx16 s[16:31], s[0:1], 0")
    g.salu("s_load_dwordx8 s[32:39], s[0:1], 64")
    g.salu("s_load_dwordx2 s[40:41], s[0:1], 96")
    g.valu('v_lshrrev_b32', V(1), 6, V(0))
    g.valu('v_and_b32', vLANE, 63, V(0))
    g.valu('v_readfirstlane_b32', sW, V(1))
    g.salu(f"s_and_b32 {sT0}, s2, 7")
    g.salu(f"s_lshr_b32 {sT1}, s2, 3")
    g.salu(f"s_lshr_b32 {sB}, {sT1}, 2")
    g.salu(f"s_bfe_u32 {sT2}, {sT1}, 0x10001")
    g.salu(f"s_lshl_b32 {sHP}, {sT0}, 1")
    g.salu(f"s_add_u32 {sHP}, {sHP}, {sT2}")
    g.salu(f"s_lshr_b32 {sP_}, {sW}, 1")
    g.salu(f"s_and_b32 {sJ}, {sW}, 1")
    g.salu(f"s_and_b32 {sT1}, {sT1}, 1")
    g.salu("s_waitcnt lgkmcnt(0)")
    g.salu(f"s_cmp_eq_u32 {sT1}, 1")
    g.branch("s_cbranch_scc1 LB_start")
    txt = ""
    ins, n = hazard_fix(head.ins)
    head.ins = ins; txt += head.text()
    for mha in (False, True):
        g = Gen(age=opts.get('age', 10))
        k = K1(g, mha, opts)
        k.gen()
        ins, n = hazard_fix(g.ins, verbose=opts.get('verbose'))
        lab = f"L{k.tag}_loop:"
        st = [i for i, x in enumerate(ins) if x.text == lab]
        if st:
            st = st[0]
            en = [i for i, x in enumerate(ins) if x.text.startswith(f"s_cbranch_scc1 L{k.tag}_loop")][0]
            body = ins[st:en + 1]
            hazard_fix(body + body, insert=False)
            nn = sum(1 for x in body if x.kind == 'nop'); nw = sum(1 for x in body if x.kind == 'wait')
            print(f"; variant {k.tag}: total nops inserted {n}; loop instrs {len(body)} nops {nn} waits {nw}", file=sys.stderr)
        g.ins = ins
        txt += g.text()
    txt += "L_exit:\n    s_endpgm\n"
    return txt

def gen_k2(opts):
    g = Gen()
    g.salu("s_cmp_ge_u32 s2, 720")
    g.branch("s_cbranch_scc1 L2_exit")
    g.salu("s_load_dwordx2 s[4:5], s[0:1], 80")
    g.salu("s_load_dwordx2 s[6:7], s[0:1], 96")
    g.salu("s_waitcnt lgkmcnt(0)")
    g.salu("s_mov_b32 s8, s6"); g.salu("s_and_b32 s9, s7, 0xffff"); g.salu(f"s_mov_b32 s10, {256*PART_BYTES}"); g.salu("s_mov_b32 s11, 0x20000")
    g.salu("s_mov_b32 s12, s4"); g.salu("s_and_b32 s13, s5, 0xffff"); g.salu(f"s_mov_b32 s14, {8*144*1152*2}"); g.salu("s_mov_b32 s15, 0x20000")
    g.salu("s_cmp_ge_u32 s2, 576")
    g.branch("s_cbranch_scc1 L2_extra")
    lf = opts.get('k2flags', '')
    g.salu("s_mul_hi_u32 s16, s2, 0x71c71c8")
    g.salu("s_mul_i32 s17, s16, 36")
    g.salu("s_sub_u32 s17, s2, s17")
    g.valu('v_lshrrev_b32', V(1), 6, V(0))
    g.valu('v_and_b32', V(2), 63, V(0))
    g.valu('v_readfirstlane_b32', S(18), V(1))
    g.salu("s_lshl_b32 s17, s17, 2")
    g.salu("s_add_u32 s17, s17, s18")
    g.salu(f"s_mul_i32 s19, s16, {16*PART_BYTES}")
    g.salu("s_lshl_b32 s20, s17, 10")
    g.salu("s_add_u32 s19, s19, s20")
    g.valu('v_lshlrev_b32', V(3), 4, V(2))
    for hp in range(16):
        g.vload('buffer_load_dwordx4', V(16 + 4 * hp, 4), V(3), S(8, 4), S(19), 0, hp, lf)
        if hp < 15: g.salu(f"s_add_u32 s19, s19, {PART_BYTES}")
    g.salu("s_mul_hi_u32 s21, s17, 0x71c71c8")
    g.salu("s_mul_i32 s22, s21, 36"); g.salu("s_sub_u32 s22, s17, s22")
    g.salu("s_and_b32 s23, s16, 7"); g.salu("s_lshr_b32 s24, s16, 3")
    g.salu("s_mul_i32 s23, s23, 144"); g.salu("s_lshl_b32 s21, s21, 5"); g.salu("s_add_u32 s23, s23, s21")
    g.salu("s_mul_i32 s23, s23, 2304"); g.salu("s_mul_i32 s24, s24, 1152"); g.salu("s_add_u32 s23, s23, s24")
    g.salu("s_lshl_b32 s22, s22, 5"); g.salu("s_add_u32 s23, s23, s22")
    g.valu('v_and_b32', V(4), 31, V(2)); g.valu('v_mul_u32_u24', V(4), 2304, V(4))
    g.valu('v_lshrrev_b32', V(5), 5, V(2)); g.valu('v_lshl_add_u32', V(4), V(5), 4, V(4))
    acc = V(8, 8)
    for hp in range(16):
        g.wait_vm(hp)
        for k in range(4):
            x = V(16 + 4 * hp + k)
            if hp == 0:
                g.valu('v_lshlrev_b32', acc[2 * k], 16, x); g.valu('v_and_b32', acc[2 * k + 1], 0xffff0000, x)
            else:
                g.valu('v_lshlrev_b32', V(6), 16, x); g.valu('v_and_b32', V(7), 0xffff0000, x)
                g.valu('v_add_f32', acc[2 * k], acc[2 * k], V(6)); g.valu('v_add_f32', acc[2 * k + 1], acc[2 * k + 1], V(7))
    for k in range(4): g.valu('v_cvt_pk_bf16_f32', V(16 + k), acc[2 * k], acc[2 * k + 1])
    g.vstore('buffer_store_dwordx4', V(16, 4), V(4), S(12, 4), S(23), 0, 'o')
    g.raw("s_endpgm", 'branch')
    g.label("L2_extra")
    g.salu("s_sub_u32 s25, s2, 576")
    g.salu("s_mul_hi_u32 s16, s25, 0x1c71c71d")
    g.salu("s_mul_i32 s17, s16, 9"); g.salu("s_sub_u32 s17, s25, s17")
    g.valu('v_lshrrev_b32', V(1), 6, V(0))
    g.valu('v_and_b32', V(2), 63, V(0))
    g.valu('v_readfirstlane_b32', S(18), V(1))
    g.salu("s_lshl_b32 s17, s17, 2"); g.salu("s_add_u32 s17, s17, s18")
    g.salu(f"s_mul_i32 s19, s16, {16*PART_BYTES}")
    g.salu("s_lshl_b32 s20, s17, 9"); g.salu("s_add_u32 s19, s19, s20"); g.salu("s_add_u32 s19, s19, 147456")
    g.valu('v_lshlrev_b32', V(3), 3, V(2))
    for hp in range(16):
        g.vload('buffer_load_dwordx2', V(16 + 2 * hp, 2), V(3), S(8, 4), S(19), 0, ('x', hp), lf)
        if hp < 15: g.salu(f"s_add_u32 s19, s19, {PART_BYTES}")
    g.salu("s_and_b32 s23, s16, 7"); g.salu("s_lshr_b32 s24, s16, 3")
    g.salu("s_mul_i32 s23, s23, 144"); g.salu("s_add_u32 s23, s23, 128")
    g.salu("s_mul_i32 s23, s23, 2304"); g.salu("s_mul_i32 s24, s24, 1152"); g.salu("s_add_u32 s23, s23, s24")
    g.salu("s_lshl_b32 s22, s17, 5"); g.salu("s_add_u32 s23, s23, s22")
    g.valu('v_and_b32', V(4), 15, V(2)); g.valu('v_mul_u32_u24', V(4), 2304, V(4))
    g.valu('v_lshrrev_b32', V(5), 4, V(2)); g.valu('v_lshl_add_u32', V(4), V(5), 3, V(4))
    for hp in range(16):
        g.wait_vm(('x', hp))
        for k in range(2):
            x = V(16 + 2 * hp + k)
            if hp == 0:
                g.valu('v_lshlrev_b32', acc[2 * k], 16, x); g.valu('v_and_b32', acc[2 * k + 1], 0xffff0000, x)
            else:
                g.valu('v_lshlrev_b32', V(6), 16, x); g.valu('v_and_b32', V(7), 0xffff0000, x)
                g.valu('v_add_f32', acc[2 * k], acc[2 * k], V(6)); g.valu('v_add_f32', acc[2 * k + 1], acc[2 * k + 1], V(7))
    for k in range(2): g.valu('v_cvt_pk_bf16_f32', V(16 + k), acc[2 * k], acc[2 * k + 1])
    g.vstore('buffer_store_dwordx2', V(16, 2), V(4), S(12, 4), S(23), 0, 'o')
    g.label("L2_exit")
    g.raw("s_endpgm", 'branch')
    ins, n = hazard_fix(g.ins)
    g.ins = ins
    return g.text()

def build(opts):
    hdr = open('cdna_kernels/' + NAME + '.s.ref').read().split('; Override launch')[0]
    k1 = f"{NAME}_kernel"; k2 = "reduce_heads_kernel"
    out = hdr
    out += f"; @launch kernel={k1} grid=(256,1,1) block=(256,1,1) lds={LDS_BYTES}\n"
    if not opts.get('dump') == 'q':
        out += f"; @launch kernel={k2} grid=(720,1,1) block=(256,1,1) lds=0\n"
    out += '.amdgcn_target "amdgcn-amd-amdhsa--gfx950"\n.text\n'
    out += f".globl {k1}\n.p2align 8\n.type {k1},@function\n{k1}:\n" + gen_k1(opts)
    out += f".globl {k2}\n.p2align 8\n.type {k2},@function\n{k2}:\n" + gen_k2(opts)
    out += '.section .rodata,"a"\n.p2align 6\n' + kd(k1, 512, 256) + ".p2align 6\n" + kd(k2, 80, 80, 32)
    return out

if __name__ == '__main__':
    opts = {}
    outp = sys.argv[1]
    for a in sys.argv[2:]:
        k, v = a.split('=', 1)
        try: v = int(v)
        except ValueError: pass
        opts[k] = v
    open(outp, 'w').write(build(opts))
```

```python
import sys
class Item:
    __slots__ = ('fn', 'cost', 'lo', 'hi', 'after', 'seq', 'slot', 'name', 'prio', 'hard', 'cls', 'ldsw', 'stream')
class Sched:
    def __init__(self, bigthr=16):
        self.bigthr = bigthr
        self.slots = []
        self.items = []
        self.streams = []
    def slot(self, fn, cap):
        self.slots.append((fn, cap)); return len(self.slots) - 1
    def add(self, fn, cost, lo, hi=None, after=(), name=None, prio=None, hard=None, cls=1):
        it = Item(); it.fn, it.cost, it.lo, it.hi = fn, cost, lo, hi
        it.after = [a for a in (after if isinstance(after, (list, tuple)) else [after]) if a is not None]
        it.seq = len(self.items); it.slot = None; it.name = name; it.prio = prio; it.hard = hard
        it.cls = 0 if cost in (4.25, 8.5, 4.5) else cls
        it.ldsw = 8.5 if cost in (8.5, 4.5) else 4.25
        it.stream = None
        if it.cls == 0 and self.bigthr < 16: it.cost = {4.25: 3, 8.5: 6, 4.5: 4}[cost]
        self.items.append(it); return it
    def chain(self, fns, lo, hi=None, after=None, spacing=0, big=12, group=1):
        prev = after; out = []; cnt = 0
        for fn, cost in fns:
            isd = spacing and cost >= big
            prev = self.add(fn, (5 if group == 1 else 3) if isd else cost, int(lo), hi, after=prev, cls=2 if isd else (3 if spacing else 1)); out.append(prev)
            if isd:
                cnt += 1
                if cnt % group == 0: lo += spacing
        return out
    def stream(self, fns, lo, hi=None, after=None, hard=None):
        out = self.chain(fns, lo, hi, after)
        for it in out: it.stream = len(self.streams); it.hard = hard
        self.streams.append(out)
        return out
    def run(self, verbose=False):
        n = len(self.slots)
        for it in self.items:
            if it.hi is None or it.hi > n - 1: it.hi = n - 1
        for it in reversed(self.items):
            for a in it.after:
                if a.hi > it.hi: a.hi = it.hi
        for it in self.items:
            for a in it.after:
                if a.lo > it.lo: it.lo = a.lo
            if it.lo > it.hi: it.hi = it.lo
        caps = {s: self.slots[s][1] for s in range(n)}; caps[-1] = 0
        used = {s: 0 for s in range(-1, n)}
        ldsu = {s: 0 for s in range(-1, n)}
        ldscap = {s: (8.5 if self.slots[s][1] >= self.bigthr else 4.25) for s in range(n)}; ldscap[-1] = 1e9
        def klass(it):
            if it.prio is not None: return (6, it.prio, it.seq)
            if it.stream is not None: return (4, it.stream, it.seq)
            if it.lo == it.hi: return (0, it.hi, it.seq)
            if it.cls in (2, 3): return (1, it.seq, 0)
            if it.cls == 0: return (2, it.hi, it.seq)
            return (3, it.hi, it.seq)
        order = sorted(self.items, key=klass)
        done = set()
        def commit(it, best):
            assert it.hard is None or best <= it.hard, (it.name, best, it.hard)
            it.slot = best; used[best] += it.cost; done.add(it.seq)
            if it.cls == 0: ldsu[best] += it.ldsw
        def place_stream(k):
            st = self.streams[k]
            for a in st[0].after: place(a)
            for it in st:
                for a in it.after:
                    if a.stream != k: place(a)
            lo = max([st[0].lo] + [a.slot for a in st[0].after]); hi = max(st[-1].hi, lo)
            free = {s: max(0.0, caps[s] - used[s]) for s in range(lo, hi + 1)}
            tf = sum(free.values()); tot = sum(it.cost for it in st)
            if tf <= 0: free = {s: 1.0 for s in free}; tf = len(free)
            if tot > tf:
                ex = (tot - tf) / max(1, sum(1 for s in free if caps[s] >= self.bigthr))
                for s in free:
                    if caps[s] >= self.bigthr: free[s] += ex
                tf = sum(free.values())
            sc = tot / tf
            budget = 0.0; i = 0
            for s in range(lo, hi + 1):
                budget += free[s] * sc
                while i < len(st) and (st[i].cost * 0.5 <= budget or s == hi):
                    it = st[i]
                    mn = max([it.lo] + [a.slot for a in it.after if a.slot is not None])
                    if mn > s and s < hi: break
                    commit(it, max(s, mn)); budget -= it.cost; i += 1
        def place(it):
            if it.seq in done: return
            if it.stream is not None:
                place_stream(it.stream); return
            for a in it.after: place(a)
            lo = max([it.lo] + [a.slot for a in it.after])
            hi = max(it.hi, lo)
            best = None
            if it.cls == 0:
                w = it.ldsw
                for s in range(lo, hi + 1):
                    if ldsu[s] + w <= ldscap[s] and used[s] + it.cost * 0.5 <= caps[s]: best = s; break
                if best is None:
                    best = min(range(lo, hi + 1), key=lambda s: (ldsu[s] + w - ldscap[s], s))
            else:
                for s in range(lo, hi + 1):
                    if used[s] + it.cost * 0.5 <= caps[s] and (it.cls != 2 or caps[s] >= self.bigthr): best = s; break
                if best is None:
                    best = min(range(lo, hi + 1), key=lambda s: (used[s] + it.cost - caps[s], s))
            commit(it, best)
        sys.setrecursionlimit(100000)
        for it in order: place(it)
        per = {}
        for it in self.items: per.setdefault(it.slot, []).append(it)
        for s in range(-1, n):
            if s >= 0: self.slots[s][0]()
            lst = sorted(per.get(s, []), key=lambda x: x.seq)
            emitted = set(); outl = []
            inslot = {id(x) for x in lst}
            for x in lst:
                if x.cls == 0 and not any(id(a) in inslot and id(a) not in emitted for a in x.after):
                    outl.append(x); emitted.add(id(x))
            for x in lst:
                if id(x) not in emitted: outl.append(x); emitted.add(id(x))
            for it in outl: it.fn()
        if verbose:
            tot = sum(it.cost for it in self.items); cap = sum(c for _, c in self.slots)
            over = sum(max(0, used[s] - self.slots[s][1]) for s in range(n))
            lo_ = sum(max(0, ldsu[s] - ldscap[s]) for s in range(n))
            print(f"; sched: slots {n} cap {cap} fill {tot} overflow {over} ldsover {lo_}", file=sys.stderr)
```

```python
import sys, math, struct
from asmgen import *
from sched import Sched

NAME = 'concat_heads__gqa_block_cached__mha_block_cached__near_ridge'
QSCALE = math.log2(math.e) / math.sqrt(128.0)
def f32hex(x): return '0x%08x' % struct.unpack('<I', struct.pack('<f', x))[0]

KSLOT = 17408; KBASE = 0
VSLOT = 16384; VBASE = 69632
LDS_BYTES = 163840
QST = [34816, 86016, 111616, 137216]
QXS = 122880
WSL = [135168, 147456, 0, 12288, 24576, 36864]
EX = 69632; EXX = 61440; MS = 36864
PART_BYTES = 165888

sW, sP_, sJ, sB, sHP = S(3), S(4), S(5), S(6), S(7)
sT0, sT1, sT2, sT3 = S(8), S(9), S(10), S(11)
srdX, srdWQ, srdK, srdV, srdWO, srdP = S(44, 4), S(48, 4), S(52, 4), S(56, 4), S(60, 4), S(64, 4)
sKOFF, sKOF2, sLOOP, sRET, sTHR = S(70), S(71), S(72), S(73), S(75)
sMK, sMV, sMX, sMW, sMO = S(76), S(77), S(78), S(79), S(82)
sEXM = S(80, 2); sSC = S(83); srdD = S(84, 4)
sA, sB2, sC = S(12), S(13), S(14)

def SS(par, qb, kb): return V(32 * par + 8 * qb + 4 * kb, 4)
def SQ(par, qb): return V(32 * par + 8 * qb, 8)
def SXk(kb): return V(64 + 4 * kb, 4)
SX = V(64, 8)
def NM(qb): return V(72 + 4 * qb, 4)
def PP(par, qb): return V(92 + 16 * par + 4 * qb, 4)
PX = V(124, 4)
def KF(i): return V(128 + 4 * (i & 7), 4)
def VF(i): return V(160 + 4 * (i & 7), 4)
def TMP(i): return V(192 + (i & 7))
SUM = [V(200 + i) for i in range(5)]
LL = [V(205 + i) for i in range(5)]
vMX = V(210)
vH = [V(211 + i) for i in range(5)]
vBP32 = V(216); vBP16 = V(217)
dO = [V(218), V(219), V(220)]
aK = [[V(221), V(222)], [V(223), V(224)]]
aV = [[V(225 + k) for k in range(4)], [V(229 + k) for k in range(4)]]
u2, u3, u4, uk = V(233), V(234), V(235), V(236)
dK = [V(245), V(246), V(247), V(248)]; dV = [V(249), V(250)]
vLANE = V(251); vT = [V(252), V(253), V(254), V(255)]
def OA(qb, e): return A(32 * qb + 4 * e, 4)
def QF(qb, ds): return A(160 + 16 * qb + 4 * ds, 4)

C_VALU, C_TRANS, C_DS, C_DMA, C_SALU, C_B128 = 4, 8, 4.25, 12, 1, 4.5
CAP = 8.5

class K1:
    def __init__(self, g, mha, opts):
        self.g, self.mha, self.o = g, mha, opts
        self.tag = 'B' if mha else 'A'
        self.nk = 4 if mha else 2
        self.kvflags = opts.get('kvflags', 'nt')
        self.wflags = opts.get('wflags', 'nt')
        self.LAT = opts.get('lat', 7)
        self.rets = []
        self.verbose = opts.get('verbose')
    def mf(self, D, Aop, Bop, C): self.g.mfma('16x16x32', D, Aop, Bop, C)
    def stamp(self, i):
        if not self.o.get('stamp'): return
        g = self.g
        g.salu("s_memrealtime s[22:23]"); g.salu("s_memtime s[20:21]")
        g.wait_lgkm0()
        g.salu(f"s_mov_b32 s{88 + 2 * i}, s22"); g.salu(f"s_mov_b32 s{89 + 2 * i}, s20")
    def stamp_out(self):
        if not self.o.get('stamp'): return
        g = self.g
        for k in range(14): g.valu('v_mov_b32', V(k), S(88 + k))
        g.valu('v_mov_b32', V(14), 0); g.valu('v_mov_b32', V(15), 0); g.valu('v_mov_b32', V(16), 0)
        g.salu(f"s_lshl_b32 {sT3}, {sW}, 6")
        g.salu("s_mov_b64 exec, 1")
        for k in range(4): g.vstore('buffer_store_dwordx4', V(4 * k, 4), V(16), srdD, sT3, 16 * k, 'dump')
    def run(self, fns):
        for f, _ in fns: f()
    def k_dma(self, t, soff, tok=None):
        g = self.g
        fns = [(lambda: g.raw(f"s_add_u32 m0, {sMK}, {KBASE + KSLOT * (t & 3)}", 'salu', [sMK], [('m0', 0)]), C_SALU), (lambda: g.salu("s_nop 0"), C_SALU)]
        for i in range(self.nk):
            fns.append((lambda i=i: g.dma(dK[i], srdK, soff, i * 1088, tok or ('K', t), self.kvflags), C_DMA))
        return fns
    def v_dma(self, t, soff, tok=None):
        g = self.g
        fns = [(lambda: g.raw(f"s_add_u32 m0, {sMV}, {VBASE + VSLOT * (t & 3)}", 'salu', [sMV], [('m0', 0)]), C_SALU), (lambda: g.salu("s_nop 0"), C_SALU)]
        for i in range(self.nk):
            fns.append((lambda i=i: g.dma(dV[i & 1], srdV, soff, i * 1024, tok or ('V', t), self.kvflags), C_DMA))
        return fns
    def kv_pre(self, kind, t):
        g = self.g
        return [(lambda: g.salu(f"s_mov_b32 {sT1}, {t*8192}"), C_SALU)] + (self.k_dma if kind == 'K' else self.v_dma)(t, sT1)

    def setup(self):
        g, mha = self.g, self.mha
        pb = 26 if mha else 16
        px, pk, pv, pwq, pwo = (S(pb + 2 * i, 2) for i in range(5))
        def mk_srd(srd, ptr, off_sgpr, bias, size):
            g.salu(f"s_add_u32 {srd[0]}, {ptr[0]}, {off_sgpr}")
            g.salu(f"s_addc_u32 {srd[1]}, {ptr[1]}, 0")
            if bias:
                g.salu(f"s_sub_u32 {srd[0]}, {srd[0]}, {bias}")
                g.salu(f"s_subb_u32 {srd[1]}, {srd[1]}, 0")
            g.salu(f"s_and_b32 {srd[1]}, {srd[1]}, 0xffff")
            if isinstance(size, int): g.salu(f"s_mov_b32 {srd[2]}, {size + bias}")
            else: g.salu(f"s_add_u32 {srd[2]}, {size}, {bias}")
            g.salu(f"s_mov_b32 {srd[3]}, 0x20000")
        t0, t1, t2, t3 = vT; l = vLANE
        g.salu(f"s_mul_i32 {sT0}, {sB}, 165888")
        mk_srd(srdX, px, sT0, 0, 165888)
        g.salu(f"s_lshl_b32 {sT0}, {sHP}, 9")
        g.salu(f"s_sub_u32 {sT1}, {576*8192}, {sT0}")
        mk_srd(srdWQ, pwq, sT0, 3072, sT1)
        g.salu(f"s_lshl_b32 {sMX}, {sW}, 11")
        g.salu(f"s_lshl_b32 {sMW}, {sW}, 12"); g.salu(f"s_add_u32 {sMW}, {sMW}, 9216")
        g.salu(f"s_lshl_b32 {sT0}, {sW}, 4")
        g.salu(f"s_mov_b64 {sEXM}, 0xffff")
        g.salu(f"s_lshl_b64 {sEXM}, {sEXM}, {sT0}")
        self.dX = [V(238), V(239), V(240)]; self.dW = [V(241), V(242), V(243), V(244)]
        g.valu('v_lshrrev_b32', u4, 4, l)
        g.valu('v_bfe_u32', u2, l, 2, 2)
        g.valu('v_and_b32', u3, 3, l)
        g.valu('v_and_b32', uk, 15, l)
        g.valu('v_and_b32', t3, 7, l)
        g.valu('v_lshrrev_b32', t0, 3, l)
        g.valu('v_and_b32', t1, 1, u4)
        g.salu(f"s_lshl_b32 {sT0}, {sJ}, 1")
        g.valu('v_or_b32', t1, sT0, t1)
        g.valu('v_lshlrev_b32', t1, 1, t1)
        g.valu('v_xor_b32', t1, t1, t3)
        g.valu('v_lshlrev_b32', t1, 4, t1)
        g.valu('v_lshl_add_u32', t1, t0, 13, t1)
        g.salu(f"s_lshl_b32 {sT0}, {sW}, 16")
        g.valu('v_add_u32', t1, sT0, t1)
        for seg in range(4):
            g.valu('v_add_u32', self.dW[seg], 3072 + seg * (128 - 1024), t1)
        g.valu('v_and_b32', t1, 1, u4); g.valu('v_lshlrev_b32', t1, 1, t1); g.valu('v_xor_b32', t1, t1, u4)
        g.valu('v_xor_b32', t1, t1, u3)
        g.valu('v_lshlrev_b32', t1, 4, t1)
        g.valu('v_lshrrev_b32', t2, 2, l)
        g.valu('v_mul_u32_u24', t2, 1152, t2)
        g.valu('v_add_u32', t1, t1, t2)
        g.valu('v_add_u32', self.dX[2], 8 * 18432, t1)
        g.salu(f"s_mul_i32 {sT0}, {sW}, {2*18432}")
        g.valu('v_add_u32', self.dX[0], sT0, t1)
        g.valu('v_add_u32', self.dX[1], 18432 - 1024, self.dX[0])
        for c in range(3): self.run(self.q_chunk_dma(c))
        if mha:
            g.salu(f"s_lshl_b32 {sT0}, {sB}, 5"); g.salu(f"s_lshl_b32 {sT1}, {sHP}, 1")
            g.salu(f"s_add_u32 {sT0}, {sT0}, {sT1}"); g.salu(f"s_add_u32 {sT0}, {sT0}, {sP_}")
        else:
            g.salu(f"s_lshl_b32 {sT0}, {sB}, 4"); g.salu(f"s_add_u32 {sT0}, {sT0}, {sHP}")
        g.salu(f"s_lshl_b32 {sT0}, {sT0}, 18")
        mk_srd(srdK, pk, sT0, 192, 262144)
        mk_srd(srdV, pv, sT0, 1024, 262144)
        if mha:
            g.salu(f"s_mul_i32 {sMK}, {sP_}, 8704"); g.salu(f"s_mul_i32 {sT0}, {sJ}, 4352"); g.salu(f"s_add_u32 {sMK}, {sMK}, {sT0}")
            g.salu(f"s_lshl_b32 {sMV}, {sW}, 12")
            g.salu(f"s_lshl_b32 {sT0}, {sJ}, 12")
        else:
            g.salu(f"s_mul_i32 {sMK}, {sW}, 2176")
            g.salu(f"s_lshl_b32 {sMV}, {sW}, 11")
            g.salu(f"s_lshl_b32 {sT0}, {sW}, 11")
        g.valu('v_xor_b32', t1, u4, uk)
        g.valu('v_lshlrev_b32', t1, 4, t1)
        g.valu('v_lshl_add_u32', t1, u4, 8, t1)
        g.valu('v_add_u32', t1, sT0, t1)
        for i in range(self.nk):
            g.valu('v_add_u32', dK[i], 192 - 64 * i, t1)
        g.valu('v_lshlrev_b32', t2, 1, u4)
        g.valu('v_xor_b32', t2, t2, t3)
        g.valu('v_lshlrev_b32', t2, 4, t2)
        g.valu('v_lshl_add_u32', t1, t0, 8, t2)
        g.valu('v_add_u32', t1, sT0, t1)
        g.valu('v_add_u32', dV[0], 1024, t1)
        g.valu('v_add_u32', dV[1], 128, t1)
        for kind, t in (('K', 0), ('K', 1), ('V', 0)): self.run(self.kv_pre(kind, t))
        g.valu('v_mul_u32_u24', t1, 1152, t0)
        g.valu('v_add_u32', t1, t1, t2)
        g.salu(f"s_mul_i32 {sT0}, {sW}, 9216")
        g.valu('v_add_u32', t1, sT0, t1)
        for seg in range(3):
            g.valu('v_add_u32', dO[seg], 2048 + seg * (128 - 1024), t1)
        g.salu(f"s_mul_i32 {sT0}, {sHP}, {256*1152}")
        mk_srd(srdWO, pwo, sT0, 2048, 256 * 1152)
        g.salu(f"s_lshl_b32 {sT0}, {sB}, 4"); g.salu(f"s_add_u32 {sT0}, {sT0}, {sHP}")
        if mha: g.salu(f"s_add_u32 {sT0}, {sT0}, 128")
        g.salu(f"s_mul_i32 {sT1}, {sT0}, {PART_BYTES}")
        mk_srd(srdP, S(40, 2), sT1, 0, PART_BYTES)
        if self.o.get('dump') or self.o.get('stamp'):
            g.salu(f"s_lshl_b32 {sT0}, {sT0}, 18"); g.salu(f"s_add_u32 {sT0}, {sT0}, {64<<20}")
            mk_srd(srdD, S(40, 2), sT0, 0, 1 << 18)
        g.salu(f"s_mul_i32 {sMO}, {sW}, 3072")
        g.salu(f"s_mov_b32 {sTHR}, {f32hex(1024.0)}")
        g.salu(f"s_mov_b32 {sSC}, {f32hex(QSCALE)}")

    def q_chunk_dma(self, c):
        g = self.g
        st = QST[(c + 2) % 4]; tok = ('Q', c)
        fns = []
        fns.append((lambda: g.raw(f"s_add_u32 m0, {sMX}, {st}", 'salu', [sMX], [('m0', 0)]), C_SALU))
        fns.append((lambda: g.salu(f"s_mov_b32 {sT2}, {c*64}"), C_SALU))
        fns.append((lambda: g.salu(f"s_mov_b32 {sT3}, {c*262144}"), C_SALU))
        fns.append((lambda: g.dma(self.dX[0], srdX, sT2, 0, tok, self.wflags), C_DMA))
        fns.append((lambda: g.dma(self.dX[1], srdX, sT2, 1024, tok, self.wflags), C_DMA))
        def p8():
            g.raw(f"s_mov_b32 m0, {st + 8192}", 'salu', [], [('m0', 0)])
            g.salu(f"s_mov_b64 exec, {sEXM}")
            g.dma(self.dX[2], srdX, sT2, 0, tok, self.wflags)
            g.raw(f"s_add_u32 m0, {sMW}, {st}", 'salu', [sMW], [('m0', 0)])
            g.salu("s_mov_b64 exec, -1")
        fns.append((p8, C_DMA))
        for seg in range(4):
            fns.append((lambda seg=seg: g.dma(self.dW[seg], srdWQ, sT3, seg * 1024, tok, self.wflags), C_DMA))
        return fns

    def qproj(self):
        g = self.g; LAT = self.LAT
        l = vLANE; t0, t1, t2, t3 = vT
        def ACC(e, qb): return V(16 * e + 4 * qb, 4) if qb < 4 else V(128 + 4 * e, 4)
        def WF(i): return V(144 + 4 * (i & 3), 4)
        def XB(c, qb): return V(160 + 20 * (c & 1) + 4 * qb, 4)
        aXB = V(200); aXX = V(201); aW = [[V(202 + 4 * lh + k) for k in range(4)] for lh in range(2)]
        st0 = QST[2]
        g.valu('v_and_b32', t0, 1, u2); g.valu('v_lshlrev_b32', t0, 1, t0); g.valu('v_xor_b32', t0, t0, u2)
        g.valu('v_xor_b32', t0, t0, u4)
        g.valu('v_lshlrev_b32', t0, 4, t0)
        g.valu('v_lshl_add_u32', t0, uk, 6, t0)
        g.salu(f"s_lshl_b32 {sT0}, {sJ}, 12"); g.salu(f"s_add_u32 {sT0}, {sT0}, {st0}")
        g.valu('v_add_u32', aXB, sT0, t0)
        g.valu('v_add_u32', aXX, 8192 + st0, t0)
        g.valu('v_lshlrev_b32', t0, 12, u4)
        g.valu('v_lshl_add_u32', t0, u2, 7, t0)
        g.valu('v_lshl_add_u32', t0, u3, 3, t0)
        g.valu('v_and_b32', t1, 1, u4); g.valu('v_lshlrev_b32', t1, 1, t1)
        g.valu('v_lshrrev_b32', t2, 1, u2); g.valu('v_or_b32', t1, t1, t2)
        for lh in range(2):
            g.salu(f"s_xor_b32 {sT1}, {sJ}, {lh}"); g.salu(f"s_lshl_b32 {sT0}, {sP_}, 1"); g.salu(f"s_add_u32 {sT0}, {sT0}, {sT1}")
            g.salu(f"s_lshl_b32 {sT0}, {sT0}, 10"); g.salu(f"s_add_u32 {sT0}, {sT0}, {st0 + 9216}")
            g.valu('v_add_u32', t3, sT0, t0)
            for k in range(4):
                g.valu('v_xor_b32', t2, k, t1)
                g.valu('v_lshl_add_u32', aW[lh][k], t2, 5, t3)
        g.wait_vm(('Q', 0)); g.barrier()
        self.stamp(1)
        NC = 18
        sc = Sched(bigthr=1)
        Ms = {}
        for c in range(NC):
            for e in range(8):
                for qb in range(5 if e < 4 else 4):
                    Cop = 0 if c == 0 else ACC(e, qb)
                    Ms[(c, e, qb)] = sc.slot(lambda c=c, e=e, qb=qb, Cop=Cop: self.mf(ACC(e, qb), WF(8 * c + e), XB(c, qb), Cop), CAP)
        def lastM(c, e): return Ms[(c, e, 4 if e < 4 else 3)]
        Qs = {}
        for ds in range(4):
            for kb in range(2):
                for qb in range(5):
                    D = SS(0, qb, kb) if qb < 4 else SXk(kb)
                    Cop = 0 if ds == 0 else D
                    Qs[(ds, kb, qb)] = None
        qorder = [(ds, kb, qb) for ds in range(4) for kb in range(2) for qb in range(4)] + [(ds, kb, 4) for ds in range(4) for kb in range(2)]
        for (ds, kb, qb) in qorder:
            D = SS(0, qb, kb) if qb < 4 else SXk(kb)
            Cop = 0 if ds == 0 else D
            Qs[(ds, kb, qb)] = sc.slot(lambda ds=ds, kb=kb, qb=qb, D=D, Cop=Cop: self.mf(D, self.KF0(2 * ds + kb), QF(qb, ds), Cop), CAP)
        bar = {-1: None}; bump_it = {}; dma_last = None
        regs = {'xb': aXB, 'xx': aXX}
        for lh in range(2):
            for k in range(4): regs[f'w{lh}{k}'] = aW[lh][k]
        for c in range(NC):
            reads = {k: [] for k in regs}
            pre = bar[c - 1]
            def dep(key): return [x for x in (pre, bump_it.get((c - 1, key))) if x is not None]
            for e in range(8):
                n = 8 * c + e; pn = n - 4
                lo = lastM(pn // 8, pn % 8) if pn >= 0 else -1
                cons = Ms[(c, e, 0)]
                key = f'w{e >> 2}{e & 3}'
                def f(n=n, e=e):
                    for u in range(2): g.ds_read('ds_read_b64_tr_b16', WF(n).sub(2 * u, 2), aW[e >> 2][e & 3], u * 512)
                reads[key].append(sc.add(f, 2 * C_DS, lo, cons - LAT, after=dep(key), hard=cons - 1, name=('W', c, e)))
            for qb in range(5):
                lo = (Ms[(c - 2, 7 if qb < 4 else 3, qb)] if c >= 2 else -1)
                cons = Ms[(c, 0, qb)]
                key = 'xb' if qb < 4 else 'xx'
                reads[key].append(sc.add(lambda c=c, qb=qb: g.ds_read('ds_read_b128', XB(c, qb), aXB if qb < 4 else aXX, qb * 1024 if qb < 4 else 0), C_B128, lo, cons - LAT, after=dep(key), hard=cons - 1, name=('X', c, qb)))
            last = c == NC - 1
            def barf(c=c, last=last):
                if not last: g.wait_vm(('Q', c + 1))
                else: g.wait_vm(('K', 0), ('K', 1))
                g.barrier()
            bs = Ms[(c, 3, 4)]
            bar[c] = sc.add(barf, 2, bs, bs, after=[pre] if pre else [])
            if not last:
                d = QST[(c + 3) % 4] - QST[(c + 2) % 4]
                for key, reg in regs.items():
                    bump_it[(c, key)] = sc.add(lambda reg=reg, d=d: g.valu('v_add_u32', reg, d & 0xffffffff, reg), C_VALU, -1, None, after=reads[key])
            if c + 3 < NC: dm = self.q_chunk_dma(c + 3)
            elif c == 15: dm = self.kv_pre('K', 2) + self.kv_pre('K', 3)
            elif c == 16: dm = self.kv_pre('V', 1)
            else: dm = []
            if dm:
                ch = sc.chain(dm, bs + 1, Ms[(c + 1, 3, 0)], after=bar[c], spacing=4.5)
                if dma_last is not None: ch[0].after.append(dma_last)
                dma_last = ch[-1]
        sc.stream([(lambda i=i: g.valu('v_accvgpr_write_b32', A(i), 0), C_VALU) for i in range(160)], Ms[(1, 0, 0)], Ms[(15, 7, 3)])
        aa = sc.stream(self.attn_addr_items(), Ms[(16, 0, 0)], Ms[(17, 2, 0)])
        lb = bar[NC - 1]
        prev = None
        conv_done = {}
        order = [(ds, qb) for ds in range(4) for qb in range(4)]
        def conv(ds, qb, dst_fn):
            a, b = ACC(2 * ds, qb), ACC(2 * ds + 1, qb)
            fns = []
            for x in (a, b):
                for r in range(4): fns.append((lambda x=x, r=r: g.valu('v_mul_f32', x[r], sSC, x[r]), C_VALU))
            for x in (a, b):
                for k in range(2): fns.append((lambda x=x, k=k: g.valu('v_cvt_pk_bf16_f32', x[k], x[2 * k], x[2 * k + 1]), C_VALU))
            fns.append((lambda: g.nop(1), 1))
            for k in range(2): fns.append((lambda k=k: g.valu('v_permlane32_swap_b32', a[k], b[k]), C_VALU))
            fns.append((lambda: g.nop(1), 1))
            for k in range(2): fns.append((lambda k=k: g.valu('v_permlane16_swap_b32', a[k], b[k]), C_VALU))
            srcs = [a[0], a[1], b[0], b[1]]
            for k in range(4): fns.append((lambda k=k: dst_fn(k, srcs[k]), C_VALU))
            return fns
        qx = V(210, 8)
        fx = []
        for ds in range(2):
            def dst(k, s, ds=ds):
                g.valu('v_accvgpr_write_b32', QF(4, ds)[k], s); g.valu('v_mov_b32', qx[4 * ds + k], s)
            fx += conv(ds, 4, dst)
        aq = aXX
        def qxw():
            g.valu('v_lshlrev_b32', aq, 4, l)
            g.salu(f"s_lshl_b32 {sT0}, {sW}, 11"); g.salu(f"s_add_u32 {sT0}, {sT0}, {QXS}")
            g.valu('v_add_u32', t0, sT0, aq)
            for s in range(2): g.ds_write('ds_write_b128', t0, qx.sub(4 * s, 4), s * 1024)
            g.salu(f"s_xor_b32 {sT0}, {sW}, 1"); g.salu(f"s_lshl_b32 {sT0}, {sT0}, 11"); g.salu(f"s_add_u32 {sT0}, {sT0}, {QXS}")
            g.valu('v_add_u32', aq, sT0, aq)
        fx.append((qxw, 30))
        for ds, qb in order:
            cons = Qs[(ds, 0, qb)]
            if ds == 0: cons = Qs[(0, 0, 0)]
            ch = sc.stream(conv(ds, qb, lambda k, s, ds=ds, qb=qb: g.valu('v_accvgpr_write_b32', QF(qb, ds)[k], s)), lastM(NC - 1, 2 * ds + 1) + 6, cons - 2, after=prev, hard=cons - 1)
            prev = ch[-1]
            if ds == 1 and qb == 3:
                chx = sc.stream(fx, lastM(NC - 1, 3) + 6, Qs[(2, 0, 0)], after=[prev][0])
                chx[0].after += [aa[-1], lb]
                prev = chx[-1]
        def bx():
            g.wait_lgkm0(); g.barrier()
            for d in range(2): g.ds_read('ds_read_b128', QF(4, 2 + d), aq, d * 1024)
        bpos = Qs[(3, 0, 0)]
        bxi = sc.add(bx, 20, bpos, bpos, after=chx[-1])
        for i in range(8):
            cons = Qs[(i >> 1, i & 1, 0)]
            sc.add(lambda i=i: self.rdK(0, i, self.KF0(i)), C_B128, lastM(NC - 1, 7) if False else Ms[(NC - 1, 4, 0)], cons - LAT, after=[lb, aa[-1]], hard=cons - 1, name=('K0', i))
        sc.run(self.verbose)

    def KF0(self, i):
        return V(160 + 4 * i, 4) if i < 4 else A(240 + 4 * (i - 4), 4)

    def attn_addr_items(self):
        g, mha = self.g, self.mha
        t0, t1, t2, t3 = vT
        F = []
        def va(*a): F.append((lambda: g.valu(*a), C_VALU))
        def sa(t): F.append((lambda: g.salu(t), C_SALU))
        va('v_mul_u32_u24', t0, 1088, u2)
        va('v_lshl_add_u32', t0, u3, 8, t0)
        va('v_xor_b32', t1, u4, u3)
        va('v_lshl_add_u32', t0, t1, 4, t0)
        for par in range(2):
            for dh in range(2):
                if mha: sa(f"s_mul_i32 {sA}, {sP_}, 8704")
                else: sa(f"s_mov_b32 {sA}, 0")
                sa(f"s_xor_b32 {sB2}, {sJ}, {dh}"); sa(f"s_lshl_b32 {sB2}, {sB2}, 7"); sa(f"s_add_u32 {sA}, {sA}, {sB2}")
                sa(f"s_xor_b32 {sB2}, {sJ}, {par}"); sa(f"s_mul_i32 {sB2}, {sB2}, {KSLOT}"); sa(f"s_add_u32 {sA}, {sA}, {sB2}")
                va('v_add_u32', aK[par][dh], sA, t0)
        va('v_and_b32', t1, 1, u4)
        va('v_lshl_add_u32', t1, t1, 2, u2)
        va('v_lshrrev_b32', t2, 1, u4)
        va('v_lshlrev_b32', t0, 11, t2)
        va('v_lshl_add_u32', t0, t1, 7, t0)
        va('v_lshl_add_u32', t0, u3, 3, t0)
        va('v_lshrrev_b32', t1, 1, t1)
        for par in range(2):
            if mha: sa(f"s_lshl_b32 {sA}, {sP_}, 13")
            else: sa(f"s_mov_b32 {sA}, 0")
            sa(f"s_xor_b32 {sB2}, {sJ}, {par}"); sa(f"s_lshl_b32 {sB2}, {sB2}, 14"); sa(f"s_add_u32 {sA}, {sA}, {sB2}"); sa(f"s_add_u32 {sA}, {sA}, {VBASE}")
            va('v_add_u32', t3, sA, t0)
            for k in range(4):
                va('v_xor_b32', t2, k, t1)
                va('v_lshl_add_u32', aV[par][k], t2, 5, t3)
        return F

    def rdK(self, tau, i, dst=None):
        ds, kb = i >> 1, i & 1
        self.g.ds_read('ds_read_b128', dst or KF(i), aK[tau & 1][ds >> 1], KBASE + KSLOT * (tau & 2) + kb * 4352 + (ds & 1) * 64)
    def rdV(self, tau, e):
        for u in range(2):
            self.g.ds_read('ds_read_b64_tr_b16', VF(e).sub(2 * u, 2), aV[tau & 1][e & 3], VSLOT * (tau & 2) + u * 4096 + (e >> 2) * 1024)
    def sm_groups(self, blocks, sub=None):
        g = self.g
        groups = []
        for Sr, Pr, s, sb in blocks:
            for k in range(4): groups.append((Sr[2 * k], Sr[2 * k + 1], Pr[k], s, k == 0, sb))
        st = []
        def fin(n):
            a, b, p, s, first, sb = groups[n]
            ta, tb = TMP(2 * n), TMP(2 * n + 1)
            if first: st.append((lambda: g.valu('v_add_f32', s, ta, tb), C_VALU))
            else:
                st.append((lambda: g.valu('v_add_f32', s, s, ta), C_VALU))
                st.append((lambda: g.valu('v_add_f32', s, s, tb), C_VALU))
            st.append((lambda: g.valu('v_cvt_pk_bf16_f32', p, ta, tb), C_VALU))
        for n, (a, b, p, s, first, sb) in enumerate(groups):
            if sb is not None:
                st.append((lambda a=a, sb=sb: g.valu('v_sub_f32', a, a, sb), C_VALU))
                st.append((lambda b=b, sb=sb: g.valu('v_sub_f32', b, b, sb), C_VALU))
            st.append((lambda a=a, n=n: g.valu('v_exp_f32', TMP(2 * n), a), C_TRANS))
            if n >= 1: fin(n - 1)
            st.append((lambda b=b, n=n: g.valu('v_exp_f32', TMP(2 * n + 1), b), C_TRANS))
        st.append((lambda: g.nop(1), 1))
        fin(len(groups) - 1)
        return st
    def check(self, kind):
        g = self.g
        stub = g.newlabel(f"L{self.tag}_stub"); ret = g.newlabel(f"L{self.tag}_ret")
        self.rets.append((stub, ret, kind))
        if kind < 2:
            g.valu('v_max3_f32', vMX, SUM[0], SUM[1], SUM[2])
            g.valu('v_max_f32', vMX, vMX, SUM[3])
            src = vMX
        else: src = SUM[4]
        g.raw(f"v_cmp_lt_f32 vcc, {sTHR}, {src}", 'valu', [sTHR, src], [('vcc', 0)], meta='v_cmp')
        g.branch(f"s_cbranch_vccnz {stub}")
        g.label(ret)
        for i in (range(4) if kind < 2 else [4]): g.valu('v_add_f32', LL[i], LL[i], SUM[i])

    def body(self, t, dmas, do_pv=True, do_qk=True, do_sm=True, vwait=None, next_v=True, bar=True, sub=None):
        g = self.g; LAT = self.LAT
        sc = Sched(bigthr=1)
        par = t & 1; even = par == 0
        B = {}; BX = {}; Q = {}
        LAG = 4
        if do_pv:
            for e in range(8):
                for qb in range(4):
                    B[(e, qb)] = sc.slot(lambda e=e, qb=qb: self.mf(OA(qb, e), VF(e), PP(par, qb), OA(qb, e)), CAP)
                if even and e >= LAG:
                    BX[e - LAG] = sc.slot(lambda e=e - LAG: self.mf(OA(4, e), VF(e), PX, OA(4, e)), CAP)
            if even:
                for e in range(8 - LAG, 8):
                    BX[e] = sc.slot(lambda e=e: self.mf(OA(4, e), VF(e), PX, OA(4, e)), CAP)
        if do_qk:
            for i in range(8):
                ds, kb = i >> 1, i & 1
                for qb in range(5 if even else 4):
                    D = SS(par, qb, kb) if qb < 4 else SXk(kb)
                    Cop = NM(qb) if ds == 0 else D
                    Q[(i, qb)] = sc.slot(lambda i=i, ds=ds, qb=qb, D=D, Cop=Cop: self.mf(D, KF(i), QF(qb, ds), Cop), CAP)
        nsl = len(sc.slots)
        NPV = self.o.get('npv', 3)
        NPK = 8
        if do_pv:
            for e in range(NPV, 8):
                sc.add(lambda e=e: self.rdV(t, e), 2 * C_DS, 0, B[(e, 0)] - LAT, hard=B[(e, 0)] - 1)
        bi = None
        if bar:
            def barf():
                if vwait: vwait()
                g.barrier()
            if even: bs = B[(3, 3)]
            else: bs = Q[(0, 3)] if do_qk else nsl - 1
            bi = sc.add(barf, 2, bs, bs)
        if do_qk:
            for i in range(8):
                lo = B[(3, 3)] if do_pv else -1
                sc.add(lambda i=i: self.rdK(t + 2, i), C_B128, lo, Q[(i, 0)] - LAT, after=bi if even else None, hard=Q[(i, 0)] - 1)
        if next_v:
            for e in range(NPV):
                lo = (BX[e] if even else B[(e, 3)]) if do_pv else 0
                if do_qk: lo = max(lo, Q[(3, 0)])
                sc.add(lambda e=e: self.rdV(t + 1, e), 2 * C_DS, lo, nsl - 1 - 4 * (NPV - 1 - e) - 3, after=bi if not even else None)
        if dmas:
            sc.chain(dmas, bi.lo + 1, None, after=bi, spacing=self.o.get('dsp', 4), group=self.o.get('dgrp', 2))
        p1 = (t + 1) & 1
        prev = None
        if do_pv and even:
            ch = sc.stream(self.sm_groups([(SX, PX, SUM[4], None)]), -1, BX[0] - 6)
            prev = sc.add(lambda: self.check(2), 12, 0, BX[0] - 3, after=ch[-1], hard=BX[0] - 2)
        if do_sm:
            st = self.sm_groups([(SQ(p1, qb), PP(p1, qb), SUM[qb], sub[qb] if sub else None) for qb in range(4)])
            end = Q[(7, 0)] - 1 if do_qk else nsl - 1
            ch = sc.stream(st, 6 if do_pv else -1, end, after=prev)
            if sub is not None:
                sc.add(lambda: [g.valu('v_mov_b32', LL[i], SUM[i]) for i in range(4)], 16, 0, None, after=ch[-1])
            elif do_qk:
                sc.add(lambda: self.check(p1), 28, Q[(2, 0)], Q[(7, 2)], after=ch[-1])
        sc.run(self.verbose and t in (0, 1))
        if do_sm and not do_qk and sub is None: self.check(p1)

    def attention(self):
        g = self.g
        l = vLANE; t0, t1, t2, t3 = vT
        d = vH
        g.valu('v_xor_b32', t0, 32, l); g.valu('v_lshlrev_b32', vBP32, 2, t0)
        g.valu('v_xor_b32', t0, 16, l); g.valu('v_lshlrev_b32', vBP16, 2, t0)
        for qb in range(5):
            cur = SQ(0, qb) if qb < 4 else SX
            g.valu('v_max_f32', d[qb], cur[0], cur[1])
            for r in range(2, 8, 2): g.valu('v_max3_f32', d[qb], d[qb], cur[r], cur[r + 1])
        for op in ('v_permlane32_swap_b32', 'v_permlane16_swap_b32'):
            for qb in range(5): g.valu('v_mov_b32', TMP(qb), d[qb])
            for qb in range(5): g.valu(op, TMP(qb), d[qb])
            for qb in range(5): g.valu('v_max_f32', d[qb], d[qb], TMP(qb))
        for qb in range(5):
            for r in range(4): g.valu('v_sub_f32', NM(qb)[r], 0, d[qb])
        for r in range(8): g.valu('v_sub_f32', SX[r], SX[r], d[4])
        g.valu('v_mov_b32', LL[4], 0)
        self.body(-1, self.kv_pre('V', 2) + self.kv_pre('V', 3), do_pv=False, sub=d, vwait=lambda: g.wait_vm(('V', 0), ('V', 1)))
        g.wait_lgkm0()
        self.stamp(3)
        g.salu(f"s_mov_b32 {sKOFF}, {4*8192}")
        g.salu(f"s_mov_b32 {sKOF2}, {5*8192}")
        NIT = 6
        g.salu(f"s_mov_b32 {sLOOP}, {NIT}")
        N = 2 * self.nk
        inc = 0 if self.o.get('fakekv') else 16384
        def std_dma(t, tokoff=0):
            if t & 1 == 0:
                return self.k_dma(t + 4, sKOFF, ('K', t + 4 + tokoff)) + self.k_dma(t + 5, sKOF2, ('K', t + 5 + tokoff))
            return self.v_dma(t + 3, sKOFF, ('V', t + 3 + tokoff)) + self.v_dma(t + 4, sKOF2, ('V', t + 4 + tokoff)) + \
                [(lambda: g.salu(f"s_add_u32 {sKOFF}, {sKOFF}, {inc}"), C_SALU), (lambda: g.salu(f"s_add_u32 {sKOF2}, {sKOF2}, {inc}"), C_SALU)]
        def loop_bodies():
            for t in range(4): self.body(t, std_dma(t, 4 * (NIT - 1)), vwait=lambda: g.wait_vm_n(N))
        lab = f"L{self.tag}_loop"
        g.label(lab)
        start = len(g.ins); nl = g.nlabel
        loop_bodies()
        end1 = len(g.ins)
        save_ins = g.ins[:]; save_rets = self.rets[:]; save_nl = g.nlabel; save_vm = (g.vm_log[:], g.vm_done)
        g.nlabel = nl; loop_bodies(); end2 = len(g.ins)
        second = g.ins[end1:end2]
        pend = [(dd, i - end1) for dd, i in g.lds_pending]
        g.nlabel = nl; loop_bodies()
        assert [i.text for i in second] == [i.text for i in g.ins[end2:]], "loop not steady"
        g.ins = save_ins[:start] + second
        g.lds_pending = [(dd, i + start) for dd, i in pend]
        self.rets = save_rets; g.nlabel = save_nl
        g.vm_log, g.vm_done = save_vm
        g.salu(f"s_sub_u32 {sLOOP}, {sLOOP}, 1")
        g.salu(f"s_cmp_lg_u32 {sLOOP}, 0")
        g.branch(f"s_cbranch_scc1 {lab}")
        g.vm_done = len(g.vm_log) - 2 * N
        self.stamp(4)
        def vw(t):
            if t & 1 == 0: return lambda: g.wait_vm(('K', t + 2), ('K', t + 3))
            return lambda: g.wait_vm(('V', t + 1), ('V', t + 2))
        for t in range(4 * NIT, 28): self.body(t, std_dma(t), vwait=vw(t))
        self.body(28, self.wo_dma(0) + self.wo_dma(1) + self.wo_dma(2) + self.wo_dma(3), vwait=vw(28))
        self.body(29, [], vwait=vw(29))
        self.body(30, self.wo_dma(4), do_qk=False)
        self.body(31, [], do_qk=False, do_sm=False, next_v=False, bar=False)

    def wo_dma(self, n):
        g = self.g
        ps, kc = n // 8, n % 8
        fns = [(lambda: g.raw(f"s_add_u32 m0, {sMO}, {WSL[n % 6]}", 'salu', [sMO], [('m0', 0)]), C_SALU),
               (lambda: g.salu(f"s_mov_b32 {sT2}, {kc*32*1152 + ps*384}"), C_SALU)]
        for seg in range(3):
            fns.append((lambda seg=seg: g.dma(dO[seg], srdWO, sT2, seg * 1024, ('W', n), self.wflags), C_DMA))
        return fns

    def handlers(self):
        g = self.g
        for kind in range(3):
            g.lds_pending = []
            g.label(f"L{self.tag}_H{kind}")
            g.nop(32)
            g.wait_lgkm0()
            d, f, tt, tu = vH[0], vH[1], vH[2], vH[3]
            if kind < 2: blocks = [(SQ(kind, qb), SQ(1 - kind, qb), NM(qb), PP(kind, qb), SUM[qb], LL[qb], qb) for qb in range(4)]
            else: blocks = [(SX, None, NM(4), PX, SUM[4], LL[4], 4)]
            for cur, nxt, nm, ps, s, ll, qb in blocks:
                g.valu('v_max_f32', d, cur[0], cur[1])
                for r in range(2, 8, 2): g.valu('v_max3_f32', d, d, cur[r], cur[r + 1])
                for hp in (vBP16, vBP32):
                    g.bpermute(tt, hp, d)
                    g.valu('v_max_f32', d, d, tt)
                g.valu('v_max_f32', d, 0, d)
                g.valu('v_sub_f32', f, 0, d)
                g.valu('v_exp_f32', f, f)
                g.nop(1)
                g.valu('v_mul_f32', ll, ll, f)
                for e in range(8):
                    for r in range(4):
                        x = TMP(4 * e + r)
                        g.valu('v_accvgpr_read_b32', x, OA(qb, e)[r])
                        g.valu('v_mul_f32', x, x, f)
                        g.valu('v_accvgpr_write_b32', OA(qb, e)[r], x)
                for r in range(4): g.valu('v_sub_f32', nm[r], nm[r], d)
                for r in range(8):
                    if nxt is not None: g.valu('v_sub_f32', nxt[r], nxt[r], d)
                    g.valu('v_sub_f32', cur[r], cur[r], d)
                for k in range(4):
                    g.valu('v_exp_f32', tt, cur[2 * k]); g.valu('v_exp_f32', tu, cur[2 * k + 1])
                    g.nop(1)
                    if k == 0: g.valu('v_add_f32', s, tt, tu)
                    else:
                        g.valu('v_add_f32', s, s, tt); g.valu('v_add_f32', s, s, tu)
                    g.valu('v_cvt_pk_bf16_f32', ps[k], tt, tu)
            g.nop(4)
            mine = [(i, r) for i, (st, r, p) in enumerate(self.rets) if p == kind]
            for i, r in mine[:-1]:
                g.salu(f"s_cmp_eq_u32 {sRET}, {i}")
                g.branch(f"s_cbranch_scc1 {r}")
            g.branch(f"s_branch {mine[-1][1]}")
        for i, (st, r, p) in enumerate(self.rets):
            g.label(st)
            g.salu(f"s_mov_b32 {sRET}, {i}")
            g.branch(f"s_branch L{self.tag}_H{p}")

    def oproj(self):
        g = self.g; LAT = self.LAT
        l = vLANE; t0, t1, t2, t3 = vT
        for hp in (vBP16, vBP32):
            for qb in range(5): g.bpermute(TMP(qb), hp, LL[qb])
            for qb in range(5): g.valu('v_add_f32', LL[qb], LL[qb], TMP(qb))
        inv = [V(128 + 2 * qb, 2) for qb in range(4)]
        for qb in range(4):
            g.valu('v_rcp_f32', inv[qb][0], LL[qb]); g.valu('v_rcp_f32', inv[qb][1], LL[qb])
        aL16 = V(237)
        g.valu('v_lshlrev_b32', aL16, 4, l)
        aEXw, aMSw, aMSr, aMLw, aMLr, aXw = V(238), V(239), V(240), V(241), V(242), V(243)
        g.salu(f"s_lshl_b32 {sT0}, {sW}, 14"); g.salu(f"s_add_u32 {sT0}, {sT0}, {EX}")
        g.valu('v_add_u32', aEXw, sT0, aL16)
        g.salu(f"s_lshl_b32 {sT0}, {sW}, 12"); g.salu(f"s_add_u32 {sT0}, {sT0}, {MS}")
        g.valu('v_add_u32', aMSw, sT0, aL16)
        g.salu(f"s_xor_b32 {sT1}, {sW}, 1"); g.salu(f"s_lshl_b32 {sT0}, {sT1}, 12"); g.salu(f"s_add_u32 {sT0}, {sT0}, {MS}")
        g.valu('v_add_u32', aMSr, sT0, aL16)
        g.valu('v_lshlrev_b32', t0, 3, l)
        g.salu(f"s_lshl_b32 {sT0}, {sW}, 9"); g.salu(f"s_add_u32 {sT0}, {sT0}, {MS + 16384}")
        g.valu('v_add_u32', aMLw, sT0, t0)
        g.salu(f"s_lshl_b32 {sT0}, {sT1}, 9"); g.salu(f"s_add_u32 {sT0}, {sT0}, {MS + 16384}")
        g.valu('v_add_u32', aMLr, sT0, t0)
        g.salu(f"s_lshl_b32 {sT0}, {sW}, 11"); g.salu(f"s_add_u32 {sT0}, {sT0}, {EXX}")
        g.valu('v_add_u32', aXw, sT0, aL16)
        g.wait_lgkm0(); g.barrier()
        nmx0 = NM(4)[0]
        OX = V(0, 32); own = V(160, 16)
        for e in range(8):
            for r in range(4): g.valu('v_accvgpr_read_b32', OX[4 * e + r], OA(4, e)[r])
        lj1 = g.newlabel(f"L{self.tag}_j1"); ljd = g.newlabel(f"L{self.tag}_jd")
        g.salu(f"s_cmp_eq_u32 {sJ}, 1")
        g.branch(f"s_cbranch_scc1 {lj1}")
        for k in range(4): g.ds_write('ds_write_b128', aMSw, OX.sub(16 + 4 * k, 4), k * 1024)
        for k in range(16): g.valu('v_mov_b32', own[k], OX[k])
        g.branch(f"s_branch {ljd}")
        g.label(lj1)
        for k in range(4): g.ds_write('ds_write_b128', aMSw, OX.sub(4 * k, 4), k * 1024)
        for k in range(16): g.valu('v_mov_b32', own[k], OX[16 + k])
        g.label(ljd)
        ml = V(176, 2)
        g.valu('v_mov_b32', ml[0], nmx0); g.valu('v_mov_b32', ml[1], LL[4])
        g.ds_write('ds_write_b64', aMLw, ml, 0)
        nmx = V(183); g.valu('v_mov_b32', nmx, nmx0)
        cnt = 0
        for qb in range(4):
            for hf in range(2):
                tmp = V(32 + 16 * (cnt & 1), 16); pk = V(64 + 8 * (cnt & 1), 8); cnt += 1
                for k in range(16): g.valu('v_accvgpr_read_b32', tmp[k], A(32 * qb + 16 * hf + k))
                for r in range(0, 16, 2): g.raw(f"v_pk_mul_f32 {tmp.sub(r, 2)}, {tmp.sub(r, 2)}, {inv[qb]}", 'valu', [tmp.sub(r, 2), inv[qb]], [tmp.sub(r, 2)], meta='v_pk_mul')
                for k in range(8): g.valu('v_cvt_pk_bf16_f32', pk[k], tmp[2 * k], tmp[2 * k + 1])
                for s in range(2):
                    g.ds_write('ds_write_b128', aEXw, pk.sub(4 * s, 4), qb * 4096 + (2 * hf + s) * 1024)
                    if self.o.get('dump') == 'o':
                        g.salu(f"s_mov_b32 {sT3}, {qb * 4096 + (2 * hf + s) * 1024}")
                        g.salu(f"s_lshl_b32 {sT0}, {sW}, 14"); g.salu(f"s_add_u32 {sT3}, {sT3}, {sT0}")
                        g.vstore('buffer_store_dwordx4', pk.sub(4 * s, 4), aL16, srdD, sT3, 0, 'dump')
        aO = [V(221 + i) for i in range(6)]; aB = V(227); aBX = V(228); vPo = [V(229), V(230)]; vPx = V(231)
        w0 = WSL[0]
        g.valu('v_and_b32', t1, 1, u4)
        g.valu('v_lshl_add_u32', t1, t1, 2, u2)
        g.valu('v_lshrrev_b32', t2, 1, u4)
        g.valu('v_mul_u32_u24', t0, 3072, t2)
        g.valu('v_lshl_add_u32', t0, t1, 7, t0)
        g.valu('v_lshl_add_u32', t0, u3, 3, t0)
        g.valu('v_lshrrev_b32', t1, 1, t1)
        for gq in range(2):
            g.salu(f"s_xor_b32 {sA}, {sJ}, {gq}"); g.salu(f"s_mul_i32 {sA}, {sA}, 3"); g.salu(f"s_mul_i32 {sT0}, {sP_}, 6"); g.salu(f"s_add_u32 {sA}, {sA}, {sT0}")
            for i in range(3):
                g.salu(f"s_add_u32 {sT0}, {sA}, {i}")
                g.salu(f"s_and_b32 {sT1}, {sT0}, 3"); g.salu(f"s_lshr_b32 {sT0}, {sT0}, 2"); g.salu(f"s_lshl_b32 {sT0}, {sT0}, 10"); g.salu(f"s_add_u32 {sT0}, {sT0}, {w0}")
                g.valu('v_xor_b32', t2, sT1, t1)
                g.valu('v_lshl_add_u32', t2, t2, 5, t0)
                g.valu('v_add_u32', aO[3 * gq + i], sT0, t2)
            g.salu(f"s_lshl_b32 {sT0}, {sA}, 10"); g.salu(f"s_mul_i32 {sT1}, {sJ}, {2*36864}"); g.salu(f"s_add_u32 {sT0}, {sT0}, {sT1}")
            g.valu('v_add_u32', vPo[gq], sT0, aL16)
            if gq == 0:
                g.salu(f"s_lshl_b32 {sT0}, {sA}, 9"); g.salu(f"s_add_u32 {sT0}, {sT0}, 147456")
                g.valu('v_lshlrev_b32', t3, 3, l)
                g.valu('v_add_u32', vPx, sT0, t3)
        g.salu(f"s_lshl_b32 {sT0}, {sJ}, 14"); g.salu(f"s_add_u32 {sT0}, {sT0}, {EX}")
        g.valu('v_add_u32', aB, sT0, aL16)
        g.valu('v_add_u32', aBX, EXX, aL16)
        g.wait_lgkm0(); g.wait_vm(('W', 0)); g.barrier()
        self.stamp(5)
        oth = V(184, 16); pml = V(178, 2); nM, fa, fb, lt = V(180), V(181), V(182), V(211)
        mg = []
        mg.append((lambda: g.ds_read('ds_read_b64', pml, aMLr, 0), 3))
        for k in range(4): mg.append((lambda k=k: g.ds_read('ds_read_b128', oth.sub(4 * k, 4), aMSr, k * 1024), 3))
        def va(*a): mg.append((lambda: g.valu(*a), C_VALU))
        va('v_min_f32', nM, nmx, pml[0])
        va('v_sub_f32', fa, nM, nmx); va('v_sub_f32', fb, nM, pml[0])
        va('v_exp_f32', fa, fa); va('v_exp_f32', fb, fb)
        va('v_mov_b32', nM, LL[4])
        va('v_mul_f32', lt, fa, nM)
        va('v_fmac_f32', lt, fb, pml[1])
        va('v_rcp_f32', lt, lt)
        va('v_mov_b32', nM, 0)
        va('v_mul_f32', fa, fa, lt); va('v_mul_f32', fb, fb, lt)
        for k in range(16):
            va('v_mul_f32', own[k], own[k], fa)
            va('v_fmac_f32', own[k], oth[k], fb)
        pkx = V(184, 8)
        for k in range(8): va('v_cvt_pk_bf16_f32', pkx[k], own[2 * k], own[2 * k + 1])
        for s in range(2): mg.append((lambda s=s: g.ds_write('ds_write_b128', aXw, pkx.sub(4 * s, 4), s * 1024), 6))
        if self.o.get('dump') == 'o':
            def dmp():
                for s in range(2):
                    g.salu(f"s_lshl_b32 {sT3}, {sW}, 11"); g.salu(f"s_add_u32 {sT3}, {sT3}, {65536 + s * 1024}")
                    g.vstore('buffer_store_dwordx4', pkx.sub(4 * s, 4), aL16, srdD, sT3, 0, 'dump')
            mg.append((dmp, 20))
        def AC(ps, i, qb):
            idx = (16 * i + 4 * qb) if qb < 4 else (96 + 4 * i)
            return V(idx, 4) if (ps & 1) == 0 else A(idx, 4)
        def OF(n, i): return V(112 + 4 * i, 4) if i >= 3 else A(128 + 12 * (n & 1) + 4 * i, 4)
        def BF(n, qb): return (V(136 + 4 * qb, 4) if (n & 1) == 0 else A(160 + 4 * qb, 4)) if qb < 4 else A(176 + 4 * (n & 1), 4)
        STG = V(160, 48)
        pflags = self.o.get('pflags', '')
        NW = 24
        sc = Sched(bigthr=1)
        Ms = {}
        for n in range(NW):
            ps, kc = n // 8, n % 8
            seq = [(i, qb) for i in range(6) for qb in range(5 if i < 3 else 4)]
            if n == 0: seq = [(i, qb) for i in range(6) for qb in range(4)]
            if n == 1: seq = [('x', i) for i in range(3)] + seq
            for it in seq:
                if it[0] == 'x':
                    i = it[1]
                    Ms[(0, i, 4)] = sc.slot(lambda i=i: self.mf(AC(0, i, 4), OF(0, i), BF(0, 4), 0), CAP)
                else:
                    i, qb = it
                    Cop = 0 if kc == 0 else AC(ps, i, qb)
                    Ms[(n, i, qb)] = sc.slot(lambda n=n, ps=ps, i=i, qb=qb, Cop=Cop: self.mf(AC(ps, i, qb), OF(n, i), BF(n, qb), Cop), CAP)
        def lastM(n, i): return Ms[(n, i, 4 if i < 3 else 3)]
        bar = {-1: None}; bump_it = {}; dma_last = None
        mgi = sc.stream(mg, 0, Ms[(0, 4, 0)])
        for n in range(NW):
            kc = n % 8; ph, s32 = kc >> 2, kc & 3
            pre = bar[n - 1]
            reads = {}
            for i in range(6):
                if i < 3: lo = lastM(n - 2, i) if n >= 2 else -1
                else: lo = lastM(n - 1, i) if n >= 1 else -1
                cons = Ms[(n, i, 0)]
                def f(n=n, i=i):
                    for u in range(2): g.ds_read('ds_read_b64_tr_b16', OF(n, i).sub(2 * u, 2), aO[i], u * 6144)
                reads[i] = sc.add(f, 2 * C_DS, lo, cons - LAT, after=[x for x in (pre, bump_it.get((n - 1, i))) if x is not None], hard=cons - 1, name=('O', n, i))
            for qb in range(4):
                lo = Ms[(n - 2, 5, qb)] if n >= 2 else -1
                cons = Ms[(n, 0, qb)]
                sc.add(lambda n=n, qb=qb, ph=ph, s32=s32: g.ds_read('ds_read_b128', BF(n, qb), aB, ph * 32768 + qb * 4096 + s32 * 1024), C_B128, lo, cons - LAT, hard=cons - 1)
            last = n == NW - 1
            def barf(n=n, last=last):
                if n == 0: g.wait_lgkm0()
                if not last: g.wait_vm(('W', n + 1))
                g.barrier()
            bs = Ms[(0, 4, 3)] if n == 0 else Ms[(n, 2, 0)]
            bar[n] = sc.add(barf, 2, bs, bs, after=[mgi[-1]] if n == 0 else [pre])
            lo = Ms[(n - 2, 2, 4)] if n >= 2 else -1
            cons = Ms[(n, 0, 4)]
            sc.add(lambda n=n, kc=kc: g.ds_read('ds_read_b128', BF(n, 4), aBX, (kc >> 2) * 4096 + (kc & 3) * 1024), C_B128, lo, cons - LAT, after=[bar[0]], hard=cons - 1)
            if not last:
                d = WSL[(n + 1) % 6] - WSL[n % 6]
                for i in range(6):
                    bump_it[(n, i)] = sc.add(lambda reg=aO[i], d=d: g.valu('v_add_u32', reg, d & 0xffffffff, reg), C_VALU, -1, None, after=reads[i])
            if n + 5 < NW:
                ch = sc.chain(self.wo_dma(n + 5), bs + 1, Ms[(n + 1, 1, 0)], after=bar[n], spacing=6)
                if dma_last is not None: ch[0].after.append(dma_last)
                dma_last = ch[-1]
        prev = mgi[-1]
        for ps in range(3):
            inA = (ps & 1) == 1
            st = []; cnt = 0
            for i in range(6):
                tb = STG.sub(24 * (cnt & 1), 24); cnt += 1
                for qb in range(4):
                    acc = AC(ps, i, qb); src = acc
                    if inA:
                        for r in range(4): st.append((lambda r=r, qb=qb, tb=tb, acc=acc: g.valu('v_accvgpr_read_b32', tb[4 * qb + r], acc[r]), C_VALU))
                        src = tb.sub(4 * qb, 4)
                    for k in range(2): st.append((lambda k=k, qb=qb, tb=tb, src=src: g.valu('v_cvt_pk_bf16_f32', tb[16 + 2 * qb + k], src[2 * k], src[2 * k + 1]), C_VALU))
                def sto(tb=tb, i=i, ps=ps):
                    for qp in range(2):
                        g.salu(f"s_mov_b32 {sT3}, {qp * 36864 + ps * 12288}")
                        g.vstore('buffer_store_dwordx4', tb.sub(16 + 4 * qp, 4), vPo[i // 3], srdP, sT3, (i % 3) * 1024, 'st', pflags)
                st.append((sto, 12))
            tb = STG.sub(24 * (cnt & 1), 24)
            for i in range(3):
                acc = AC(ps, i, 4); src = acc
                if inA:
                    for r in range(4): st.append((lambda r=r, i=i, acc=acc, tb=tb: g.valu('v_accvgpr_read_b32', tb[4 * i + r], acc[r]), C_VALU))
                    src = tb.sub(4 * i, 4)
                for k in range(2): st.append((lambda k=k, i=i, src=src, tb=tb: g.valu('v_cvt_pk_bf16_f32', tb[16 + 2 * i + k], src[2 * k], src[2 * k + 1]), C_VALU))
            def stx(tb=tb, ps=ps):
                g.salu(f"s_mov_b32 {sT3}, {ps * 6144}")
                for i in range(3): g.vstore('buffer_store_dwordx2', tb.sub(16 + 2 * i, 2), vPx, srdP, sT3, i * 512, 'st', pflags)
            st.append((stx, 16))
            lastB = Ms[(8 * ps + 7, 5, 3)]
            if ps < 2: ch = sc.stream(st, lastB + 6, Ms[(8 * (ps + 1) + 6, 0, 0)], after=prev)
            else: ch = sc.stream(st, lastM(NW - 1, 0) + 8, None, after=prev);
            if ps == 2:
                k = 0
                for i in range(6):
                    nitems = 8 + 1
                    for it in ch[k:k + nitems]: it.lo = min(lastM(NW - 1, i) + 6, len(sc.slots) - 1)
                    k += nitems
            prev = ch[-1]
        sc.run(self.verbose)

    def gen(self):
        g = self.g
        g.label(f"L{self.tag}_start")
        if self.o.get('only') and self.o.get('only') != self.tag:
            g.raw("s_endpgm", 'branch'); return
        self.setup()
        if self.o.get('stamp'):
            g.salu("s_mov_b32 s88, s98"); g.salu("s_mov_b32 s89, s99")
        self.qproj()
        self.stamp(2)
        if self.o.get('dump') == 'q':
            aL16 = V(237)
            g.wait_lgkm0()
            g.valu('v_lshlrev_b32', aL16, 4, vLANE)
            for n in range(20):
                for k in range(4): g.valu('v_accvgpr_read_b32', V(200 + k), A(160 + 4 * n + k))
                g.salu(f"s_mul_i32 {sT3}, {sW}, {20*1024}"); g.salu(f"s_add_u32 {sT3}, {sT3}, {n*1024}")
                g.vstore('buffer_store_dwordx4', V(200, 4), aL16, srdD, sT3, 0, 'dump')
                g.nop(2)
            g.wait_vm_n(0)
            g.raw("s_endpgm", 'branch')
            return
        self.attention()
        self.oproj()
        self.stamp(6)
        self.stamp_out()
        g.raw("s_endpgm", 'branch')
        self.handlers()

from gen1 import kd

def gen_k1(opts):
    g = Gen()
    g.salu("s_cmp_ge_u32 s2, 256")
    g.branch("s_cbranch_scc1 L_exit")
    g.salu("s_load_dwordx16 s[16:31], s[0:1], 0")
    g.salu("s_load_dwordx8 s[32:39], s[0:1], 64")
    g.salu("s_load_dwordx2 s[40:41], s[0:1], 96")
    if opts.get('stamp'):
        g.salu("s_memrealtime s[98:99]"); g.salu("s_memtime s[100:101]")
    g.valu('v_lshrrev_b32', V(1), 6, V(0))
    g.valu('v_and_b32', vLANE, 63, V(0))
    g.valu('v_readfirstlane_b32', sW, V(1))
    g.salu(f"s_and_b32 {sT0}, s2, 7")
    g.salu(f"s_lshr_b32 {sT1}, s2, 3")
    g.salu(f"s_lshr_b32 {sB}, {sT1}, 2")
    g.salu(f"s_bfe_u32 {sT2}, {sT1}, 0x10001")
    g.salu(f"s_lshl_b32 {sHP}, {sT0}, 1")
    g.salu(f"s_add_u32 {sHP}, {sHP}, {sT2}")
    g.salu(f"s_lshr_b32 {sP_}, {sW}, 1")
    g.salu(f"s_and_b32 {sJ}, {sW}, 1")
    g.salu(f"s_and_b32 {sT1}, {sT1}, 1")
    g.salu("s_waitcnt lgkmcnt(0)")
    if opts.get('stamp'): g.salu("s_mov_b32 s99, s100")
    g.salu(f"s_cmp_eq_u32 {sT1}, 1")
    g.branch("s_cbranch_scc1 LB_start")
    ins, n = hazard_fix(g.ins); g.ins = ins
    txt = g.text()
    for mha in (False, True):
        g = Gen(age=opts.get('age', 14))
        k = K1(g, mha, opts)
        k.gen()
        ins, n = hazard_fix(g.ins, verbose=opts.get('verbose') == 2)
        lab = f"L{k.tag}_loop:"
        st = [i for i, x in enumerate(ins) if x.text == lab]
        if st:
            st = st[0]
            en = [i for i, x in enumerate(ins) if x.text.startswith(f"s_cbranch_scc1 L{k.tag}_loop")][0]
            body = ins[st:en + 1]
            hazard_fix(body + body, insert=False)
            nn = sum(1 for x in body if x.kind == 'nop'); nw = sum(1 for x in body if x.kind == 'wait')
            print(f"; variant {k.tag}: total nops inserted {n}; loop instrs {len(body)} nops {nn} waits {nw}", file=sys.stderr)
        g.ins = ins
        txt += g.text()
    txt += "L_exit:\n    s_endpgm\n"
    return txt

def gen_k2(opts):
    g = Gen()
    g.salu("s_cmp_ge_u32 s2, 720")
    g.branch("s_cbranch_scc1 L2_exit")
    g.salu("s_load_dwordx2 s[4:5], s[0:1], 80")
    g.salu("s_load_dwordx2 s[6:7], s[0:1], 96")
    g.valu('v_lshrrev_b32', V(1), 6, V(0))
    g.valu('v_and_b32', V(2), 63, V(0))
    g.valu('v_readfirstlane_b32', S(18), V(1))
    g.salu("s_waitcnt lgkmcnt(0)")
    g.salu("s_mov_b32 s8, s6"); g.salu("s_and_b32 s9, s7, 0xffff"); g.salu(f"s_mov_b32 s10, {256*PART_BYTES}"); g.salu("s_mov_b32 s11, 0x20000")
    g.salu("s_mov_b32 s12, s4"); g.salu("s_and_b32 s13, s5, 0xffff"); g.salu(f"s_mov_b32 s14, {8*144*1152*2}"); g.salu("s_mov_b32 s15, 0x20000")
    g.valu('v_and_b32', V(4), 15, V(2)); g.valu('v_mul_u32_u24', V(4), 2304, V(4))
    g.valu('v_lshrrev_b32', V(5), 4, V(2)); g.valu('v_lshl_add_u32', V(4), V(5), 3, V(4))
    g.salu("s_cmp_ge_u32 s2, 576")
    g.branch("s_cbranch_scc1 L2_extra")
    lf = opts.get('k2flags', '')
    acc = V(8, 8)
    def accum(n, tokf):
        for hp in range(16):
            g.wait_vm(tokf(hp))
            for k in range(n):
                x = V(16 + n * hp + k)
                if hp == 0:
                    g.valu('v_lshlrev_b32', acc[2 * k], 16, x); g.valu('v_and_b32', acc[2 * k + 1], 0xffff0000, x)
                else:
                    g.valu('v_lshlrev_b32', V(6), 16, x); g.valu('v_and_b32', V(7), 0xffff0000, x)
                    g.valu('v_add_f32', acc[2 * k], acc[2 * k], V(6)); g.valu('v_add_f32', acc[2 * k + 1], acc[2 * k + 1], V(7))
        for k in range(n): g.valu('v_cvt_pk_bf16_f32', V(16 + k), acc[2 * k], acc[2 * k + 1])
    g.salu("s_mul_hi_u32 s16, s2, 0x71c71c8")
    g.salu("s_mul_i32 s17, s16, 36"); g.salu("s_sub_u32 s17, s2, s17")
    g.salu("s_lshl_b32 s17, s17, 2"); g.salu("s_add_u32 s17, s17, s18")
    g.salu(f"s_mul_i32 s19, s16, {16*PART_BYTES}")
    g.salu("s_lshl_b32 s20, s17, 10"); g.salu("s_add_u32 s19, s19, s20")
    g.valu('v_lshlrev_b32', V(3), 4, V(2))
    for hp in range(16):
        g.vload('buffer_load_dwordx4', V(16 + 4 * hp, 4), V(3), S(8, 4), S(19), 0, hp, lf)
        if hp < 15: g.salu(f"s_add_u32 s19, s19, {PART_BYTES}")
    g.salu("s_mul_hi_u32 s21, s17, 0x71c71c8")
    g.salu("s_mul_i32 s22, s21, 36"); g.salu("s_sub_u32 s22, s17, s22")
    g.salu("s_and_b32 s23, s16, 7"); g.salu("s_lshr_b32 s24, s16, 3")
    g.salu("s_mul_i32 s23, s23, 144"); g.salu("s_lshl_b32 s21, s21, 5"); g.salu("s_add_u32 s23, s23, s21")
    g.salu("s_mul_i32 s23, s23, 2304"); g.salu("s_mul_i32 s24, s24, 1152"); g.salu("s_add_u32 s23, s23, s24")
    g.salu("s_lshl_b32 s22, s22, 5"); g.salu("s_add_u32 s23, s23, s22")
    g.salu(f"s_add_u32 s25, s23, {16*2304}")
    accum(4, lambda hp: hp)
    g.vstore('buffer_store_dwordx2', V(16, 2), V(4), S(12, 4), S(23), 0, 'o')
    g.vstore('buffer_store_dwordx2', V(18, 2), V(4), S(12, 4), S(25), 0, 'o')
    g.raw("s_endpgm", 'branch')
    g.label("L2_extra")
    g.salu("s_sub_u32 s25, s2, 576")
    g.salu("s_mul_hi_u32 s16, s25, 0x1c71c71d")
    g.salu("s_mul_i32 s17, s16, 9"); g.salu("s_sub_u32 s17, s25, s17")
    g.salu("s_lshl_b32 s17, s17, 2"); g.salu("s_add_u32 s17, s17, s18")
    g.salu(f"s_mul_i32 s19, s16, {16*PART_BYTES}")
    g.salu("s_lshl_b32 s20, s17, 9"); g.salu("s_add_u32 s19, s19, s20"); g.salu("s_add_u32 s19, s19, 147456")
    g.valu('v_lshlrev_b32', V(3), 3, V(2))
    for hp in range(16):
        g.vload('buffer_load_dwordx2', V(16 + 2 * hp, 2), V(3), S(8, 4), S(19), 0, ('x', hp), lf)
        if hp < 15: g.salu(f"s_add_u32 s19, s19, {PART_BYTES}")
    g.salu("s_and_b32 s23, s16, 7"); g.salu("s_lshr_b32 s24, s16, 3")
    g.salu("s_mul_i32 s23, s23, 144"); g.salu("s_add_u32 s23, s23, 128")
    g.salu("s_mul_i32 s23, s23, 2304"); g.salu("s_mul_i32 s24, s24, 1152"); g.salu("s_add_u32 s23, s23, s24")
    g.salu("s_lshl_b32 s22, s17, 5"); g.salu("s_add_u32 s23, s23, s22")
    accum(2, lambda hp: ('x', hp))
    g.vstore('buffer_store_dwordx2', V(16, 2), V(4), S(12, 4), S(23), 0, 'o')
    g.label("L2_exit")
    g.raw("s_endpgm", 'branch')
    ins, n = hazard_fix(g.ins); g.ins = ins
    return g.text()

def build(opts):
    hdr = open('cdna_kernels/' + NAME + '.s.ref').read().split('; Override launch')[0]
    k1 = f"{NAME}_kernel"; k2 = "reduce_heads_kernel"
    out = hdr
    out += f"; @launch kernel={k1} grid=(256,1,1) block=(256,1,1) lds={LDS_BYTES}\n"
    out += f"; @launch kernel={k2} grid=(720,1,1) block=(256,1,1) lds=0\n"
    out += '.amdgcn_target "amdgcn-amd-amdhsa--gfx950"\n.text\n'
    out += f".globl {k1}\n.p2align 8\n.type {k1},@function\n{k1}:\n" + gen_k1(opts)
    out += f".globl {k2}\n.p2align 8\n.type {k2},@function\n{k2}:\n" + gen_k2(opts)
    out += '.section .rodata,"a"\n.p2align 6\n' + kd(k1, 512, 256) + ".p2align 6\n" + kd(k2, 80, 80, 32)
    return '\n'.join(ln.strip() if not ln.startswith(';') else ln for ln in out.split('\n'))

if __name__ == '__main__':
    opts = {'k2flags': 'nt'}
    outp = sys.argv[1]
    for a in sys.argv[2:]:
        k, v = a.split('=', 1)
        try: v = int(v)
        except ValueError: pass
        opts[k] = v
    open(outp, 'w').write(build(opts))
```
